```python
import torch

def _softmax(x, axis=-1):
    return torch.softmax(x, dim=axis)
def _gelu(x):
    return torch.nn.functional.gelu(x, approximate="tanh")
def _silu(x):
    return torch.nn.functional.silu(x)
def _sigmoid(x):
    return torch.sigmoid(x)
def _layernorm(x, axis=-1, eps=1e-5):
    m = x.mean(dim=axis, keepdim=True)
    v = x.var(dim=axis, keepdim=True, unbiased=False)
    return (x - m) / torch.sqrt(v + eps)
def _scatter_add(tgt, idx, src, axis=0):
    return tgt.clone().index_add_(axis, idx, src)
def _segment_sum(src, seg, n):
    out = torch.zeros((n,) + src.shape[1:], dtype=src.dtype)
    return out.index_add_(0, seg, src)
def _pad(x, pw):
    flat = tuple(v for pair in reversed(pw) for v in pair)
    return torch.nn.functional.pad(x, flat)

kernel_name = 'parallel_sum__mha_block__geglu_ffn__prompt'

def setup_inputs():

    _w = (lambda a: (lambda t: t.to(torch.bfloat16) if t.is_floating_point() else t)(torch.as_tensor(a)))
    def _A_setup():
        B, S, D, H = 1, 2048, 512, 32
        return {
            "x": _w((lambda *s: torch.randn(*s, dtype=torch.bfloat16) * 0.05)(B, S, D)),
            "wqkv": _w((lambda *s: torch.randn(*s, dtype=torch.bfloat16) * 0.2)(D, 3 * D)),
            "wo": _w((lambda *s: torch.randn(*s, dtype=torch.bfloat16) * 0.1)(D, D)),
        }
    _A_in = _A_setup()

    def _B_setup():
        B, S, D, F = 1, 2048, 512, 1376
        return {
            "x": _w((lambda *s: torch.randn(*s, dtype=torch.bfloat16) * 0.05)(B, S, D)),
            "w_gate": _w((lambda *s: torch.randn(*s, dtype=torch.bfloat16) * 0.1)(D, F)),
            "w_up": _w((lambda *s: torch.randn(*s, dtype=torch.bfloat16) * 0.1)(D, F)),
            "w_down": _w((lambda *s: torch.randn(*s, dtype=torch.bfloat16) * 0.1)(F, D)),
        }
    _B_in = _B_setup()

    return {
        "A_x": _A_in["x"],
        "A_wqkv": _A_in["wqkv"],
        "A_wo": _A_in["wo"],
        "B_x": _B_in["x"],
        "B_w_gate": _B_in["w_gate"],
        "B_w_up": _B_in["w_up"],
        "B_w_down": _B_in["w_down"],
    }

def reference(A_x, A_wqkv, A_wo, B_x, B_w_gate, B_w_up, B_w_down):
    def _A_ref(x, wqkv, wo):
        B, S, D = x.shape
        H = 32
        Dh = D // H
        qkv = (lambda x, *d: x.permute(*d))((x @ wqkv).reshape(B, S, 3, H, Dh), 2, 0, 3, 1, 4)
        q, k, v = qkv[0], qkv[1], qkv[2]
        scores = torch.einsum("bhqd,bhkd->bhqk", q, k) * (Dh ** -0.5)
        p = _softmax(scores, axis=-1)
        o = torch.einsum("bhqk,bhkd->bhqd", p, v)
        return (lambda x, *d: x.permute(*d))(o, 0, 2, 1, 3).reshape(B, S, D) @ wo

    def _B_ref(x, w_gate, w_up, w_down):
        return (_gelu(x @ w_gate) * (x @ w_up)) @ w_down

    x = A_x
    xn = _layernorm(x, axis=-1)
    return x + _A_ref(xn, A_wqkv, A_wo) + _B_ref(xn, B_w_gate, B_w_up, B_w_down)
```

```python
class Emit:
    def __init__(self):
        self.lines = []
        self.vm = []
        self.lg = []
        self.uid = 0
    def __call__(self, s):
        for l in s.split('\n'):
            l = l.strip()
            if l:
                self.lines.append(('' if l.endswith(':') or l.startswith('.') else '    ') + l)
    def label(self, base):
        self.uid += 1
        return f'L_{base}_{self.uid}'
    def comment(self, s):
        self.lines.append('    ; ' + s)
    def vmem(self, ins, tag):
        self(ins); self.vm.append(tag)
    def vm_count(self, tag):
        idx = max((i for i, t in enumerate(self.vm) if t == tag), default=-1)
        if idx < 0: return None
        return len(self.vm) - 1 - idx
    def wait_vm(self, tag):
        n = self.vm_count(tag)
        if n is None: return
        assert n <= 63, n
        self(f's_waitcnt vmcnt({n})')
        self.vm = self.vm[len(self.vm) - n:] if n else []
    def wait_vm_all(self):
        self('s_waitcnt vmcnt(0)'); self.vm = []
    def lds(self, ins, tag):
        self(ins); self.lg.append(tag)
    def wait_lg(self, tag):
        idx = max((i for i, t in enumerate(self.lg) if t == tag), default=-1)
        if idx < 0: return
        n = len(self.lg) - 1 - idx
        if n > 15:
            n = 15
        self(f's_waitcnt lgkmcnt({n})')
        self.lg = self.lg[len(self.lg) - n:] if n else []
    def wait_lg_all(self):
        self('s_waitcnt lgkmcnt(0)'); self.lg = []
    def text(self):
        return '\n'.join(self.lines) + '\n'

def vr(a, n=1):
    return f'v{a}' if n == 1 else f'v[{a}:{a+n-1}]'
def sr(a, n=1):
    return f's{a}' if n == 1 else f's[{a}:{a+n-1}]'
def f32(x):
    import struct
    return '0x%08x' % struct.unpack('<I', struct.pack('<f', x))[0]
```

```python
import sys, math
from asmlib import Emit, vr, sr, f32

NAME = 'parallel_sum__mha_block__geglu_ffn__prompt'
QOFF, KOFF, VOFF, A3OFF = 0, 2 << 20, 4 << 20, 6 << 20
NKS = 118
WS_BYTES = A3OFF + 64 * NKS * 1024
OOB = 0x40000000
LOG2E = 1.4426950408889634
SH = 72.0

SRD_X, SRD_WQKV, SRD_WG, SRD_WU, SRD_WD, SRD_WO, SRD_WS, SRD_OUT, SRD_DBG = 8, 12, 16, 20, 24, 28, 32, 36, 40
S_W, S_XCD, S_SLOT, S_I, S_G, S_RT = 44, 45, 46, 47, 48, 49
S_T0, S_T1, S_T2, S_T3 = 50, 51, 52, 53
S_XSO, S_WSO, S_LX, S_LW = 54, 55, 56, 57
S_CG0, S_CG1, S_CG2 = 58, 59, 60
S_HS0, S_HS1, S_HS2 = 61, 62, 63
S_ONES = 84
def srd(b): return sr(b, 4)

class Cfg:
    fused = False
    @property
    def sc(self): return ' sc1' if self.fused else ''
cfg = Cfg()

def setup(e, end_label):
    e(f'''
    s_cmp_ge_u32 s2, 256
    s_cbranch_scc1 {end_label}
    s_load_dwordx16 s[64:79], s[0:1], 0
    s_load_dwordx4 s[80:83], s[0:1], 64
    v_lshrrev_b32 v2, 6, v0
    v_and_b32 v1, 63, v0
    s_and_b32 s{S_XCD}, s2, 7
    v_readfirstlane_b32 s{S_W}, v2
    s_lshr_b32 s{S_SLOT}, s2, 3
    s_mov_b32 s{S_ONES}, 0x3f803f80
    ''')
    sizes = {SRD_X: 2097152, SRD_WQKV: 1572864, SRD_WO: 524288, SRD_WG: 1409024, SRD_WU: 1409024, SRD_WD: 1409024,
             SRD_OUT: 2097152, SRD_DBG: 256, SRD_WS: WS_BYTES}
    for b, sz in sizes.items():
        e(f's_mov_b32 s{b+2}, {sz}')
        e(f's_mov_b32 s{b+3}, 0x00020000')
    e('s_waitcnt lgkmcnt(0)')
    for b, src in {SRD_X: 64, SRD_WQKV: 66, SRD_WO: 68, SRD_WG: 72, SRD_WU: 74, SRD_WD: 76, SRD_OUT: 78, SRD_DBG: 80, SRD_WS: 82}.items():
        e(f's_mov_b64 {sr(b,2)}, {sr(src,2)}')

XF = 128
ACC0, ACC1 = 64, 80
WF = 96
V_XO0, V_XO1, V_WO0, V_WO1 = 2, 3, 4, 5
V_XA = 6
V_WA = 18
V_GO, V_UO = 21, 22
V_BA = 23
V_S0, V_S1, V_SX, V_SQ = 26, 27, 28, 29
V_MU, V_R, V_VE = 30, 31, 32
V_L16 = 33
V_CA, V_CB = 34, 35
V_MF = 36
V_SF0, V_SF1 = 40, 44
V_T = 48
STATS = 2 * 32768 + 28672

def slot_of(n): return n % 5
def lds_sel(slot):
    return slot >> 1, (slot & 1) * 32768

def ab_setup(e):
    e(f'''
    s_and_b32 s{S_T0}, s{S_XCD}, 3
    s_lshl_b32 s{S_T0}, s{S_T0}, 2
    s_and_b32 s{S_T1}, s{S_SLOT}, 3
    s_add_u32 s{S_I}, s{S_T0}, s{S_T1}
    s_lshr_b32 s{S_T0}, s{S_XCD}, 2
    s_lshl_b32 s{S_T0}, s{S_T0}, 3
    s_lshr_b32 s{S_T1}, s{S_SLOT}, 2
    s_add_u32 s{S_G}, s{S_T0}, s{S_T1}
    s_and_b32 s{S_RT}, s{S_W}, 3
    s_lshl_b32 s{S_XSO}, s{S_I}, 17
    s_lshl_b32 s{S_WSO}, s{S_G}, 6
    s_lshl_b32 s{S_LX}, s{S_W}, 11
    s_lshl_b32 s{S_LW}, s{S_W}, 10
    s_add_u32 s{S_LW}, s{S_LW}, 16384
    v_lshlrev_b32 v{V_L16}, 4, v1
    ''')
    T = V_T
    e(f'''
    v_lshrrev_b32 v{T}, 3, v1
    s_lshl_b32 s{S_T0}, s{S_W}, 4
    v_add_u32 v{T}, s{S_T0}, v{T}
    v_lshlrev_b32 v{T}, 10, v{T}
    v_lshrrev_b32 v{T+1}, 4, v1
    v_xor_b32 v{T+1}, v{T+1}, v1
    v_and_b32 v{T+1}, 7, v{T+1}
    v_lshl_add_u32 v{V_XO0}, v{T+1}, 4, v{T}
    v_xor_b32 v{V_XO1}, 64, v{V_XO0}
    v_add_u32 v{V_XO1}, 8192, v{V_XO1}
    ''')
    for dst, add in ((V_WO0, 0), (V_WO1, 512)):
        e(f'''
        v_add_u32 v{T}, {add}, v0
        v_mul_u32_u24 v{T+1}, 43691, v{T}
        v_lshrrev_b32 v{T+1}, 19, v{T+1}
        v_mul_u32_u24 v{T+2}, 12, v{T+1}
        v_sub_u32 v{T+2}, v{T}, v{T+2}
        v_and_b32 v{T+3}, 1, v{T+2}
        v_lshlrev_b32 v{T+3}, 4, v{T+3}
        v_bfe_u32 v{T+4}, v{T+2}, 1, 1
        v_lshl_add_u32 v{T+3}, v{T+4}, 10, v{T+3}
        v_lshrrev_b32 v{T+4}, 2, v{T+2}
        v_lshl_add_u32 v{T+3}, v{T+4}, 5, v{T+3}
        v_lshlrev_b32 v{T+4}, 4, v{T+2}
        v_add_u32 v{T+4}, 1920, v{T+4}
        v_cmp_le_u32 vcc, 8, v{T+2}
        v_mul_u32_u24 v{T+1}, 3072, v{T+1}
        s_nop 1
        v_cndmask_b32 v{T+3}, v{T+3}, v{T+4}, vcc
        v_add_u32 v{dst}, v{T+1}, v{T+3}
        ''')

def ab_setup2(e):
    T = V_T
    e(f'''
    v_and_b32 v{T}, 31, v1
    s_lshl_b32 s{S_T0}, s{S_RT}, 5
    v_add_u32 v{T}, s{S_T0}, v{T}
    v_lshrrev_b32 v{T+1}, 1, v{T}
    v_lshrrev_b32 v{T+2}, 5, v1
    v_xor_b32 v{T+1}, v{T+1}, v{T+2}
    v_and_b32 v{T+1}, 7, v{T+1}
    v_lshlrev_b32 v{T+1}, 4, v{T+1}
    v_lshl_add_u32 v{V_XA}, v{T}, 7, v{T+1}
    ''')
    for ks in range(1, 4):
        e(f'v_xor_b32 v{V_XA+ks}, {32*ks}, v{V_XA}')
    for s in (1, 2):
        for ks in range(4):
            e(f'v_add_u32 v{V_XA+4*s+ks}, {65536*s}, v{V_XA+ks}')
    e(f'''
    v_lshrrev_b32 v{T}, 5, v1
    v_lshlrev_b32 v{T}, 3, v{T}
    v_bfe_u32 v{T+1}, v1, 2, 2
    v_add_u32 v{T}, v{T}, v{T+1}
    v_bfe_u32 v{T+2}, v1, 4, 1
    v_and_b32 v{T+3}, 3, v1
    v_lshlrev_b32 v{T+3}, 3, v{T+3}
    v_mul_u32_u24 v{T+4}, 192, v{T}
    v_lshl_add_u32 v{T+4}, v{T+2}, 5, v{T+4}
    v_add_u32 v{T+4}, v{T+4}, v{T+3}
    v_add_u32 v{V_WA}, 16384, v{T+4}
    v_add_u32 v{V_WA+1}, {16384+65536}, v{T+4}
    v_add_u32 v{V_WA+2}, {16384+131072}, v{T+4}
    ''')
    e(f'''
    s_lshr_b32 s{S_T0}, s{S_W}, 2
    v_xor_b32 v{T+4}, s{S_T0}, v{T+2}
    v_lshlrev_b32 v{T+4}, 5, v{T+4}
    v_lshl_add_u32 v{T+4}, v{T+2}, 14, v{T+4}
    v_lshl_add_u32 v{T+4}, v{T}, 6, v{T+4}
    v_add_u32 v{V_BA}, v{T+4}, v{T+3}
    v_add_u32 v{V_BA+1}, 65536, v{V_BA}
    v_add_u32 v{V_BA+2}, 131072, v{V_BA}
    ''')
    e(f'''
    v_lshrrev_b32 v{T}, 2, v1
    s_lshl_b32 s{S_T0}, s{S_W}, 5
    v_add_u32 v{T}, s{S_T0}, v{T}
    v_mul_u32_u24 v{T}, 2752, v{T}
    v_and_b32 v{T+1}, 3, v1
    v_lshl_add_u32 v{V_GO}, v{T+1}, 4, v{T}
    v_xor_b32 v{V_UO}, 32, v{V_GO}
    ''')
    e(f'''
    s_mul_i32 s{S_T0}, s{S_G}, 3
    s_lshl_b32 s{S_T1}, s{S_G}, 1
    s_add_u32 s{S_T1}, s{S_T1}, 11
    s_cmp_lt_u32 s{S_G}, 11
    s_cselect_b32 s{S_T0}, s{S_T0}, s{S_T1}
    s_cselect_b32 s{S_T2}, 0, {OOB}
    s_lshl_b32 s{S_CG0}, s{S_T0}, 6
    s_add_u32 s{S_CG1}, s{S_CG0}, 64
    s_add_u32 s{S_CG2}, s{S_CG0}, 128
    s_add_u32 s{S_CG2}, s{S_CG2}, s{S_T2}
    s_lshl_b32 s{S_T1}, s{S_I}, 2
    s_add_u32 s{S_T1}, s{S_T1}, s{S_RT}
    s_mul_i32 s{S_T1}, s{S_T1}, {NKS}
    s_lshl_b32 s{S_T0}, s{S_T0}, 1
    s_add_u32 s{S_T1}, s{S_T1}, s{S_T0}
    s_lshr_b32 s{S_T0}, s{S_W}, 2
    s_add_u32 s{S_T1}, s{S_T1}, s{S_T0}
    s_add_u32 s{S_T1}, s{S_T1}, 32
    s_lshl_b32 s{S_T1}, s{S_T1}, 10
    s_add_u32 s{S_HS0}, s{S_T1}, {A3OFF}
    s_add_u32 s{S_HS1}, s{S_HS0}, 2048
    s_add_u32 s{S_HS2}, s{S_HS0}, 4096
    s_add_u32 s{S_HS2}, s{S_HS2}, s{S_T2}
    ''')
    for r in list(range(ACC0, ACC0 + 32)) + [V_S0, V_S1, V_SX, V_SQ, V_MF + 2, V_MF + 3, V_SF0 + 2, V_SF0 + 3, V_SF1 + 2, V_SF1 + 3]:
        e(f'v_mov_b32 v{r}, 0')

def dma(e, voff, srdb, soff, tag, extra=''):
    e.vmem(f'buffer_load_dwordx4 v{voff}, {srd(srdb)}, s{soff} offen lds{extra}', tag)

def ab_load(e, n, low):
    base = slot_of(n) * 32768
    tag = f'ld{n}'
    if n < 8:
        e(f's_add_u32 m0, s{S_LX}, {base}')
        e(f's_add_u32 s{S_T0}, s{S_XSO}, {n*128}')
        dma(e, V_XO0, SRD_X, S_T0, tag)
        e(f's_add_u32 m0, s{S_LX}, {base+1024}')
        e(f's_add_u32 s{S_T1}, s{S_WSO}, {n*64*3072}')
        dma(e, V_XO1, SRD_X, S_T0, tag)
        e(f's_add_u32 m0, s{S_LW}, {base}')
        e('s_nop 0')
        dma(e, V_WO0, SRD_WQKV, S_T1, tag)
        if low:
            e(f's_add_u32 m0, s{S_LW}, {base+8192}')
            e('s_nop 0')
            dma(e, V_WO1, SRD_WQKV, S_T1, tag)
    else:
        u = n - 8
        cg = (S_CG0, S_CG1, S_CG2)[u >> 1]
        k0 = (u & 1) * 256 * 2752
        e(f's_add_u32 m0, s{S_LX}, {base}')
        e(f's_add_u32 s{S_T0}, s{cg}, {k0}')
        dma(e, V_GO, SRD_WG, S_T0, tag)
        e(f's_add_u32 m0, s{S_LX}, {base+16384}')
        e(f's_add_u32 s{S_T1}, s{cg}, {k0+16*2752}')
        dma(e, V_UO, SRD_WU, S_T0, tag)
        e(f's_add_u32 m0, s{S_LX}, {base+1024}')
        e('s_nop 0')
        dma(e, V_GO, SRD_WG, S_T1, tag)
        e(f's_add_u32 m0, s{S_LX}, {base+16384+1024}')
        e('s_nop 0')
        dma(e, V_UO, SRD_WU, S_T1, tag)

def mfma(d, a, b, c=None):
    c = vr(d, 16) if c is None else c
    return f'v_mfma_f32_32x32x16_bf16 {vr(d,16)}, {vr(a,4)}, {vr(b,4)}, {c}'

def split_frag(e, dst, src, tmp):
    e(f'''
    v_cvt_pk_bf16_f32 v{dst}, v{src}, v{src}
    v_and_b32 v{tmp}, 0xffff0000, v{dst}
    v_sub_f32 v{tmp}, v{src}, v{tmp}
    v_cvt_pk_bf16_f32 v{dst+1}, v{tmp}, v{tmp}
    ''')

def mu_frag(e):
    T = V_T
    e(f'''
    v_sub_f32 v{T}, 0, v{V_MU}
    v_cvt_pk_bf16_f32 v{T+1}, v{T}, v{T}
    v_and_b32 v{T+1}, 0xffff0000, v{T+1}
    v_sub_f32 v{T+1}, v{T}, v{T+1}
    v_cvt_pk_bf16_f32 v{V_MF}, v{T}, v{T+1}
    v_cvt_pk_bf16_f32 v{V_MF+1}, v{T}, v{T+1}
    ''')

def phase_a_path(e, low):
    T = V_T
    for n in range(5):
        ab_load(e, n, low)
    ab_setup2(e)
    ntile = 2 if low else 1
    for c in range(8):
        e.comment(f'--- phase A chunk {c}')
        e.wait_vm(f'ld{c}')
        e('s_barrier')
        sel, ib = lds_sel(slot_of(c))
        for ks in range(4):
            e.lds(f'ds_read_b128 {vr(XF+16*c+4*ks,4)}, v{V_XA+4*sel+ks} offset:{ib}', f'k{ks}')
            for t in range(ntile):
                tile = t if low else 2
                for jj in range(2):
                    e.lds(f'ds_read_b64_tr_b16 {vr(WF+8*ks+4*t+2*jj,2)}, v{V_WA+sel} offset:{ib+(16*ks+4*jj)*192+tile*64}', f'k{ks}')
        if c >= 1:
            ab_load(e, c + 4, low)
        for ks in range(4):
            e.wait_lg(f'k{ks}')
            x = XF + 16 * c + 4 * ks
            if low:
                e(mfma(ACC0, WF + 8 * ks, x))
                for j in range(4):
                    e(f'v_dot2_f32_bf16 v{V_S0}, v{WF+8*ks+j}, s{S_ONES}, v{V_S0}')
                e(mfma(ACC1, WF + 8 * ks + 4, x))
                for j in range(4):
                    e(f'v_dot2_f32_bf16 v{V_S1}, v{WF+8*ks+4+j}, s{S_ONES}, v{V_S1}')
            else:
                e(mfma(ACC0, x, WF + 8 * ks))
                for j in range(4):
                    e(f'v_dot2_f32_bf16 v{V_S0}, v{WF+8*ks+j}, s{S_ONES}, v{V_S0}')
                    e(f'v_dot2_f32_bf16 v{V_SX}, v{x+j}, s{S_ONES}, v{V_SX}')
                    e(f'v_dot2_f32_bf16 v{V_SQ}, v{x+j}, v{x+j}, v{V_SQ}')
    e(f'''
    v_and_b32 v{T+8}, 31, v1
    s_lshl_b32 s{S_T0}, s{S_RT}, 5
    v_add_u32 v{T+8}, s{S_T0}, v{T+8}
    v_lshlrev_b32 v{T+8}, 2, v{T+8}
    v_add_u32 v{T+8}, {STATS}, v{T+8}
    ''')
    if not low:
        e(f'''
        s_nop 1
        v_mov_b32 v{T}, v{V_SX}
        v_mov_b32 v{T+1}, v{V_SQ}
        s_nop 1
        v_permlane32_swap_b32 v{V_SX}, v{T}
        v_permlane32_swap_b32 v{V_SQ}, v{T+1}
        s_nop 1
        v_add_f32 v{V_SX}, v{V_SX}, v{T}
        v_add_f32 v{V_SQ}, v{V_SQ}, v{T+1}
        v_mul_f32 v{V_MU}, {f32(1/512)}, v{V_SX}
        v_mul_f32 v{V_SQ}, {f32(1/512)}, v{V_SQ}
        v_fma_f32 v{V_VE}, -v{V_MU}, v{V_MU}, v{V_SQ}
        v_max_f32 v{V_VE}, 0, v{V_VE}
        v_add_f32 v{V_VE}, {f32(1e-5)}, v{V_VE}
        v_rsq_f32 v{V_R}, v{V_VE}
        ds_write_b32 v{T+8}, v{V_MU}
        ds_write_b32 v{T+8}, v{V_VE} offset:1024
        ds_write_b32 v{T+8}, v{V_R} offset:512
        ''')
        split_frag(e, V_SF0, V_S0, T + 2)
        mu_frag(e)
        e.wait_lg_all()
        e.wait_vm('ld8')
        e('s_barrier')
        e(f'''
        v_lshrrev_b32 v{T+9}, 5, v1
        v_lshlrev_b32 v{T+9}, 4, v{T+9}
        s_lshl_b32 s{S_T0}, s{S_RT}, 7
        s_add_u32 s{S_T0}, s{S_T0}, {STATS+512}
        v_add_u32 v{T+9}, s{S_T0}, v{T+9}
        ''')
        e(mfma(ACC0, V_MF, V_SF0))
        for i in range(4):
            e(f'ds_read_b128 {vr(WF+4*i,4)}, v{T+9} offset:{32*i}')
        e(f'''
        v_bfe_u32 v{T}, v1, 4, 1
        v_lshlrev_b32 v{T}, 16, v{T}
        v_lshrrev_b32 v{T+1}, 5, v1
        v_lshl_add_u32 v{T}, v{T+1}, 8, v{T}
        v_and_b32 v{T+1}, 15, v1
        v_lshl_add_u32 v{T}, v{T+1}, 4, v{T}
        s_lshl_b32 s{S_T0}, s{S_G}, 7
        s_lshl_b32 s{S_T1}, s{S_I}, 2
        s_add_u32 s{S_T0}, s{S_T0}, s{S_T1}
        s_add_u32 s{S_T0}, s{S_T0}, s{S_RT}
        s_lshl_b32 s{S_T0}, s{S_T0}, 10
        s_add_u32 s{S_T0}, s{S_T0}, {VOFF}
        s_nop 7
        s_waitcnt lgkmcnt(0)
        ''')
        for r in range(16):
            e(f'v_mul_f32 v{ACC0+r}, v{ACC0+r}, v{WF+r}')
        for r in range(8):
            e(f'v_cvt_pk_bf16_f32 v{WF+16+r}, v{ACC0+2*r}, v{ACC0+2*r+1}')
        e.vmem(f'buffer_store_dwordx4 {vr(WF+16,4)}, v{T}, {srd(SRD_WS)}, s{S_T0} offen{cfg.sc}', 'qkv')
        e.vmem(f'buffer_store_dwordx4 {vr(WF+20,4)}, v{T}, {srd(SRD_WS)}, s{S_T0} offen offset:512{cfg.sc}', 'qkv')
    else:
        e('s_nop 2')
        split_frag(e, V_SF0, V_S0, T + 2)
        split_frag(e, V_SF1, V_S1, T + 3)
        e.wait_vm('ld8')
        e('s_barrier')
        e(f'''
        ds_read_b32 v{V_MU}, v{T+8}
        ds_read_b32 v{V_R}, v{T+8} offset:512
        ds_read_b32 v{V_VE}, v{T+8} offset:1024
        s_lshl_b32 s{S_T0}, s{S_G}, 7
        s_lshl_b32 s{S_T1}, s{S_I}, 2
        s_add_u32 s{S_T0}, s{S_T0}, s{S_T1}
        s_add_u32 s{S_T0}, s{S_T0}, s{S_RT}
        s_lshl_b32 s{S_T0}, s{S_T0}, 10
        s_add_u32 s{S_T1}, s{S_T0}, {KOFF}
        s_add_u32 s{S_T2}, s{S_T0}, 65536
        s_add_u32 s{S_T3}, s{S_T1}, 65536
        s_waitcnt lgkmcnt(0)
        ''')
        mu_frag(e)
        e(f'v_mul_f32 v{T+4}, {f32(0.25*LOG2E)}, v{V_R}')
        e('s_nop 0')
        e(mfma(ACC0, V_SF0, V_MF))
        e(mfma(ACC1, V_SF1, V_MF))
        e('s_nop 12')
        for t, acc in enumerate((ACC0, ACC1)):
            for r in range(16):
                e(f'v_mul_f32 v{acc+r}, v{acc+r}, v{T+4 if r < 8 else V_R}')
            for r in range(8):
                e(f'v_cvt_pk_bf16_f32 v{WF+8*t+r}, v{acc+2*r}, v{acc+2*r+1}')
            e.vmem(f'buffer_store_dwordx4 {vr(WF+8*t,4)}, v{V_L16}, {srd(SRD_WS)}, s{(S_T0,S_T2)[t]} offen{cfg.sc}', 'qkv')
            e.vmem(f'buffer_store_dwordx4 {vr(WF+8*t+4,4)}, v{V_L16}, {srd(SRD_WS)}, s{(S_T1,S_T3)[t]} offen{cfg.sc}', 'qkv')
    assert QOFF == 0

C0 = -2.0 * LOG2E * math.sqrt(2.0 / math.pi)
C1 = C0 * 0.044715
LA = 3
BWF = 112
HP = 96
def b_epilogue(acc, sreg, sfrag, hs):
    T = V_T
    L = []
    L += ['s_nop 2',
          f'v_cvt_pk_bf16_f32 v{sfrag}, v{sreg}, v{sreg}',
          f'v_and_b32 v{T}, 0xffff0000, v{sfrag}',
          f'v_sub_f32 v{T}, v{sreg}, v{T}',
          f'v_cvt_pk_bf16_f32 v{sfrag+1}, v{T}, v{T}',
          f'v_mov_b32 v{sreg}, 0',
          's_nop 0',
          mfma(acc, sfrag, V_MF),
          'WAIT12']
    for j in range(8): L.append(f'v_mul_f32 v{T+j}, v{acc+j}, v{acc+j}')
    for j in range(8): L.append(f'v_fma_f32 v{T+j}, v{T+j}, v{V_CA}, v{V_CB}')
    for j in range(8): L.append(f'v_mul_f32 v{T+j}, v{T+j}, v{acc+j}')
    for j in range(8): L.append(f'v_exp_f32 v{T+j}, v{T+j}')
    for j in range(8): L.append(f'v_mul_f32 v{T+8+j}, v{acc+j}, v{acc+8+j}')
    for j in range(8): L.append(f'v_fma_f32 v{T+j}, v{T+j}, v{V_VE}, v{V_VE}')
    for j in range(8): L.append(f'v_rcp_f32 v{T+j}, v{T+j}')
    L.append('s_nop 0')
    for j in range(8): L.append(f'v_mul_f32 v{T+j}, v{T+j}, v{T+8+j}')
    for j in range(4): L.append(f'v_cvt_pk_bf16_f32 v{HP+j}, v{T+2*j}, v{T+2*j+1}')
    L.append(('vmem', f'buffer_store_dwordx4 {vr(HP,4)}, v{V_L16}, {srd(SRD_WS)}, s{hs} offen{cfg.sc}', 'hst'))
    return L

def emit_item(e, it):
    if isinstance(it, tuple): e.vmem(it[1], it[2])
    else: e(it)

def phase_b(e):
    e.comment('=== phase B')
    e(f'''
    v_mul_f32 v{V_CB}, {f32(C0)}, v{V_R}
    v_mul_f32 v{V_CA}, v{V_R}, v{V_R}
    v_mul_f32 v{V_CA}, v{V_CA}, v{V_R}
    v_mul_f32 v{V_CA}, {f32(C1)}, v{V_CA}
    v_mov_b32 v{V_S0}, 0
    v_mov_b32 v{V_S1}, 0
    ''')
    def rd(kg):
        if kg >= 96: return
        u = kg >> 4
        sel, ib = lds_sel(slot_of(8 + u))
        for jj in range(2):
            e.lds(f'ds_read_b64_tr_b16 {vr(BWF+4*(kg&3)+2*jj,2)}, v{V_BA+sel} offset:{ib+1024*(kg&15)+256*jj}', f'b{kg}')
    for kg in range(LA): rd(kg)
    fill = []
    hold = 0
    for kg in range(96):
        p, kk = kg >> 5, kg & 31
        acc = (ACC0, ACC1)[p & 1]
        sreg = (V_S0, V_S1)[p & 1]
        nk = kg + LA
        if nk < 96 and (nk & 15) == 0:
            n = 8 + (nk >> 4)
            e.wait_vm(f'ld{n}')
            if n == 9 and cfg.fused:
                e.wait_vm('qkv')
            e('s_barrier')
            if n == 9:
                if cfg.fused: signal(e, 1)
                ab_load(e, 12, True)
            if n == 10: ab_load(e, 13, True)
        rd(nk)
        e.wait_lg(f'b{kg}')
        w = BWF + 4 * (kg & 3)
        e(mfma(acc, w, XF + 4 * kk, '0' if kk == 0 else None))
        for j in range(4):
            e(f'v_dot2_f32_bf16 v{sreg}, v{w+j}, s{S_ONES}, v{sreg}')
        if hold > 0:
            hold -= 1
        else:
            cnt = 0
            while fill and cnt < 4:
                it = fill.pop(0)
                if it == 'WAIT12':
                    hold = 2
                    break
                emit_item(e, it); cnt += 1
        if kk == 31:
            assert not fill
            fill = b_epilogue(acc, sreg, (V_SF0, V_SF1)[p & 1], (S_HS0, S_HS1, S_HS2)[p])
    for it in fill:
        if it == 'WAIT12': e('s_nop 12')
        else: emit_item(e, it)

def phase_ab(e):
    ab_setup(e)
    lhi, lb = e.label('a_hi'), e.label('b')
    e(f's_cmp_ge_u32 s{S_W}, 4')
    e(f's_cbranch_scc1 {lhi}')
    vm0 = list(e.vm)
    phase_a_path(e, True)
    vm_low = list(e.vm)
    e(f's_branch {lb}')
    e(f'{lhi}:')
    e.vm = list(vm0); e.lg = []
    phase_a_path(e, False)
    vm_hi = list(e.vm)
    e(f'{lb}:')
    e.vm = vm_hi if len(vm_hi) <= len(vm_low) else vm_low
    assert [t for t in vm_hi if t != 'qkv'] == [t for t in vm_low if t != 'qkv'], (vm_hi, vm_low)
    phase_b(e)

S_HEAD, S_QB, S_FB, S_IT, S_SYNC = 54, 55, 56, 57, 58
S_VM = 86
C_Q = 4
C_KA, C_VA = 2, 3
C_K = 8
C_V = 16
C_C = 32
C_S = 48
C_P = 80
C_O = 96
C_T = 112
C_L16 = 88

def phase_c(e):
    T = C_T
    e(f'''
    s_lshl_b32 s{S_HEAD}, s{S_XCD}, 2
    s_and_b32 s{S_T0}, s{S_SLOT}, 3
    s_add_u32 s{S_HEAD}, s{S_HEAD}, s{S_T0}
    s_lshr_b32 s{S_QB}, s{S_SLOT}, 2
    v_lshlrev_b32 v{C_L16}, 4, v1
    s_lshl_b32 s{S_T0}, s{S_HEAD}, 6
    s_add_u32 s{S_T0}, s{S_T0}, s{S_W}
    s_lshl_b32 s{S_T1}, s{S_QB}, 3
    s_add_u32 s{S_T1}, s{S_T1}, s{S_T0}
    s_lshl_b32 s{S_T1}, s{S_T1}, 10
    s_lshl_b32 s{S_T0}, s{S_T0}, 10
    s_lshl_b32 s{S_T3}, s{S_W}, 11
    ''')
    e.vmem(f'buffer_load_dwordx4 {vr(C_Q,4)}, v{C_L16}, {srd(SRD_WS)}, s{S_T1} offen{cfg.sc}', 'q')
    for j in range(8):
        e(f's_add_u32 m0, s{S_T3}, {j*16384}')
        e(f's_add_u32 s{S_T2}, s{S_T0}, {KOFF + j*8192}')
        dma(e, C_L16, SRD_WS, S_T2, f'kv{j}', cfg.sc)
        e(f's_add_u32 m0, s{S_T3}, {j*16384+1024}')
        e(f's_add_u32 s{S_T2}, s{S_T0}, {VOFF + j*8192}')
        dma(e, C_L16, SRD_WS, S_T2, f'kv{j}', cfg.sc)
    e(f'''
    s_mov_b32 s{S_VM}, 0x0000ffff
    s_mov_b32 s{S_VM+1}, 0x0000ffff
    s_mov_b32 s{S_FB}, 0
    s_mov_b32 s{S_SYNC}, 1
    ''')
    for r in range(16): e(f'v_mov_b32 v{C_V+r}, s{S_ONES}')
    e.wait_vm('kv0')
    e('s_barrier')
    e(f'''
    ds_read_b128 {vr(C_K,4)}, v{C_L16}
    ds_read_b128 {vr(C_K+4,4)}, v{C_L16} offset:2048
    s_waitcnt lgkmcnt(1)
    {mfma(C_S, C_K, C_Q, '0')}
    s_waitcnt lgkmcnt(0)
    {mfma(C_S+16, C_K+4, C_Q, '0')}
    s_nop 11
    v_max3_f32 v{T}, v{C_S}, v{C_S+1}, v{C_S+2}
    ''')
    for r in range(3, 31, 2):
        e(f'v_max3_f32 v{T}, v{T}, v{C_S+r}, v{C_S+r+1}')
    e(f'''
    v_max_f32 v{T}, v{T}, v{C_S+31}
    v_add_f32 v{T}, {f32(SH)}, v{T}
    ''')
    lrun, lloop, lnosync, lfb, lfbl, ldone = (e.label(x) for x in ('c_run', 'c_loop', 'c_nosync', 'c_fb', 'c_fbl', 'c_done'))
    e(f'{lrun}:')
    e(f'''
    v_mov_b32 v{T+1}, v{T}
    s_nop 1
    v_permlane32_swap_b32 v{T}, v{T+1}
    s_nop 1
    v_max_f32 v{T}, v{T}, v{T+1}
    v_sub_f32 v{T}, 0, v{T}
    ''')
    for r in range(16): e(f'v_mov_b32 v{C_C+r}, v{T}')
    for r in range(16): e(f'v_mov_b32 v{C_O+r}, 0')
    e(f'''
    v_mov_b32 v{C_KA}, v{C_L16}
    v_lshrrev_b32 v{C_VA}, 5, v1
    v_lshlrev_b32 v{C_VA}, 8, v{C_VA}
    v_and_b32 v{T+1}, 15, v1
    v_lshl_add_u32 v{C_VA}, v{T+1}, 4, v{C_VA}
    ds_read_b128 {vr(C_K,4)}, v{C_KA}
    ds_read_b128 {vr(C_K+4,4)}, v{C_KA} offset:2048
    s_mov_b64 exec, {sr(S_VM,2)}
    ds_read_b128 {vr(C_V,4)}, v{C_VA} offset:1024
    ds_read_b128 {vr(C_V+4,4)}, v{C_VA} offset:1536
    s_mov_b64 exec, -1
    s_mov_b32 s{S_IT}, 0
    s_waitcnt lgkmcnt(3)
    {mfma(C_S, C_K, C_Q, vr(C_C,16))}
    s_nop 7
    .p2align 6
    {lloop}:
    ''')
    for t in range(8):
        S, S2 = C_S + 16 * (t & 1), C_S + 16 * ((t + 1) & 1)
        Kn, Knn = C_K + 4 * ((t + 1) & 1), C_K + 4 * (t & 1)
        V, Vn = C_V + 8 * (t & 1), C_V + 8 * ((t + 1) & 1)
        if t == 6:
            e(f'''
            s_cmp_eq_u32 s{S_SYNC}, 0
            s_cbranch_scc1 {lnosync}
            s_waitcnt vmcnt(0)
            s_barrier
            s_mov_b32 s{S_SYNC}, 0
            {lnosync}:
            ''')
        e(f'ds_read_b128 {vr(Knn,4)}, v{C_KA} offset:{(t+2)*2048}')
        e(f's_mov_b64 exec, {sr(S_VM,2)}')
        e(f'ds_read_b128 {vr(Vn,4)}, v{C_VA} offset:{(t+1)*2048+1024}')
        e(f'ds_read_b128 {vr(Vn+4,4)}, v{C_VA} offset:{(t+1)*2048+1536}')
        e('s_mov_b64 exec, -1')
        for r in range(3): e(f'v_exp_f32 v{S+r}, v{S+r}')
        e('s_waitcnt lgkmcnt(5)')
        e(mfma(S2, Kn, C_Q, vr(C_C, 16)))
        for r in range(3, 8): e(f'v_exp_f32 v{S+r}, v{S+r}')
        for r in range(3): e(f'v_cvt_pk_bf16_f32 v{C_P+r}, v{S+2*r}, v{S+2*r+1}')
        e(f'v_exp_f32 v{S+8}, v{S+8}')
        e(f'v_cvt_pk_bf16_f32 v{C_P+3}, v{S+6}, v{S+7}')
        for r in range(9, 11): e(f'v_exp_f32 v{S+r}, v{S+r}')
        e('s_waitcnt lgkmcnt(3)')
        e(mfma(C_O, V, C_P))
        for r in range(11, 16): e(f'v_exp_f32 v{S+r}, v{S+r}')
        for r in range(4, 8): e(f'v_cvt_pk_bf16_f32 v{C_P+r}, v{S+2*r}, v{S+2*r+1}')
        if t == 7:
            e(f'v_add_u32 v{C_KA}, 16384, v{C_KA}')
            e(f'v_add_u32 v{C_VA}, 16384, v{C_VA}')
        else:
            e('s_nop 1')
        e(mfma(C_O, V + 4, C_P + 4))
    e(f'''
    s_add_u32 s{S_IT}, s{S_IT}, 1
    s_cmp_lt_u32 s{S_IT}, 8
    s_cbranch_scc1 {lloop}
    s_waitcnt lgkmcnt(0)
    s_nop 12
    ''')
    e.vm = []
    e(f'v_mul_f32 v{T}, 0, v{C_O}')
    for r in range(1, 9): e(f'v_fma_f32 v{T}, v{C_O+r}, 0, v{T}')
    e(f'''
    v_cmp_u_f32 vcc, v{T}, v{T}
    s_cmp_lg_u32 s{S_FB}, 0
    s_cbranch_scc1 {ldone}
    s_nop 3
    s_cbranch_vccz {ldone}
    {lfb}:
    s_mov_b32 s{S_FB}, 1
    s_mov_b32 s{S_IT}, 0
    v_mov_b32 v{C_KA}, v{C_L16}
    v_mov_b32 v{T}, 0xff800000
    {lfbl}:
    ds_read_b128 {vr(C_K,4)}, v{C_KA}
    v_add_u32 v{C_KA}, 2048, v{C_KA}
    s_waitcnt lgkmcnt(0)
    {mfma(C_S, C_K, C_Q, '0')}
    s_nop 15
    ''')
    for r in range(0, 16, 2):
        e(f'v_max3_f32 v{T}, v{T}, v{C_S+r}, v{C_S+r+1}')
    e(f'''
    s_add_u32 s{S_IT}, s{S_IT}, 1
    s_cmp_lt_u32 s{S_IT}, 64
    s_cbranch_scc1 {lfbl}
    s_branch {lrun}
    {ldone}:
    v_rcp_f32 v{T}, v{C_O+8}
    s_lshl_b32 s{S_T0}, s{S_QB}, 3
    s_add_u32 s{S_T0}, s{S_T0}, s{S_W}
    s_mul_i32 s{S_T0}, s{S_T0}, {NKS}
    s_add_u32 s{S_T0}, s{S_T0}, s{S_HEAD}
    s_lshl_b32 s{S_T0}, s{S_T0}, 10
    s_add_u32 s{S_T0}, s{S_T0}, {A3OFF}
    ''')
    for r in range(8): e(f'v_mul_f32 v{C_O+r}, v{C_O+r}, v{T}')
    for r in range(4): e(f'v_cvt_pk_bf16_f32 v{C_P+r}, v{C_O+2*r}, v{C_O+2*r+1}')
    e.vmem(f'buffer_store_dwordx4 {vr(C_P,4)}, v{C_L16}, {srd(SRD_WS)}, s{S_T0} offen{cfg.sc}', 'ost')

S_RB, S_CGD, S_KQ, S_RT2, S_AB, S_LD = 54, 55, 56, 57, 58, 59
D_AF = 128
D_ACC = 64
D_WF = 96
D_WO, D_L16, D_XO = 2, 3, 4
D_BA = 5
D_X = 12
D_T = 16
D_RED = 32
def d_load(e, u):
    base = (u % 5) * 32768
    s, r0 = (SRD_WD, 256 * u) if u < 6 else (SRD_WO, 256 * (u - 6))
    for j in range(4):
        e(f's_add_u32 m0, s{S_LD}, {base + j*1024}')
        e(f's_add_u32 s{S_T0}, s{S_CGD}, {(r0 + 8*j)*1024}')
        dma(e, D_WO, s, S_T0, f'dw{u}')

def phase_d(e):
    T = D_T
    e(f'''
    s_lshl_b32 s{S_RB}, s{S_XCD}, 2
    s_and_b32 s{S_T0}, s{S_SLOT}, 3
    s_add_u32 s{S_RB}, s{S_RB}, s{S_T0}
    s_lshr_b32 s{S_CGD}, s{S_SLOT}, 2
    s_lshl_b32 s{S_CGD}, s{S_CGD}, 7
    s_and_b32 s{S_KQ}, s{S_W}, 3
    s_lshr_b32 s{S_RT2}, s{S_W}, 2
    s_lshl_b32 s{S_LD}, s{S_W}, 12
    v_lshlrev_b32 v{D_L16}, 4, v1
    v_lshrrev_b32 v{T}, 3, v1
    s_lshl_b32 s{S_T0}, s{S_W}, 5
    v_add_u32 v{T}, s{S_T0}, v{T}
    v_lshlrev_b32 v{T}, 10, v{T}
    v_bfe_u32 v{T+1}, v1, 4, 1
    v_lshlrev_b32 v{T+1}, 2, v{T+1}
    v_xor_b32 v{T+1}, v{T+1}, v1
    v_and_b32 v{T+1}, 7, v{T+1}
    v_lshl_add_u32 v{D_WO}, v{T+1}, 4, v{T}
    s_lshl_b32 s{S_AB}, s{S_RB}, 1
    s_add_u32 s{S_AB}, s{S_AB}, s{S_RT2}
    s_mul_i32 s{S_AB}, s{S_AB}, {NKS}
    s_add_u32 s{S_AB}, s{S_AB}, s{S_KQ}
    s_lshl_b32 s{S_AB}, s{S_AB}, 10
    s_add_u32 s{S_AB}, s{S_AB}, {A3OFF}
    ''')
    def a_load(j):
        if j < 22:
            off = (32 + 4 * j) * 1024
            e(f's_add_u32 s{S_T1}, s{S_AB}, {off}')
            if j == 21:
                e(f's_cmp_lt_u32 s{S_KQ}, 2')
                e(f's_cselect_b32 s{S_T1}, s{S_T1}, {OOB}')
        else:
            e(f's_add_u32 s{S_T1}, s{S_AB}, {4*(j-22)*1024}')
        e.vmem(f'buffer_load_dwordx4 {vr(D_AF+4*j,4)}, v{D_L16}, {srd(SRD_WS)}, s{S_T1} offen{cfg.sc}', f'af{j}')
    for u in range(5):
        d_load(e, u)
        for j in range(4 * u, 4 * u + 4): a_load(j)
    a_load(20); a_load(21)
    if not cfg.fused:
        for j in range(22, 30): a_load(j)
    e(f'''
    v_lshrrev_b32 v{T}, 5, v1
    v_lshlrev_b32 v{T}, 2, v{T}
    v_bfe_u32 v{T+1}, v1, 2, 2
    v_add_u32 v{T}, v{T}, v{T+1}
    s_lshl_b32 s{S_T0}, s{S_KQ}, 4
    v_add_u32 v{T}, s{S_T0}, v{T}
    v_lshlrev_b32 v{T}, 7, v{T}
    v_bfe_u32 v{T+2}, v1, 4, 1
    v_lshl_add_u32 v{T}, v{T+2}, 5, v{T}
    v_and_b32 v{T+2}, 1, v1
    v_lshl_add_u32 v{T}, v{T+2}, 4, v{T}
    v_bfe_u32 v{T+2}, v1, 1, 1
    v_lshl_add_u32 v{T}, v{T+2}, 3, v{T}
    v_bfe_u32 v{T+2}, v1, 3, 1
    v_lshl_add_u32 v{D_BA}, v{T+2}, 6, v{T}
    v_xor_b32 v{D_BA+1}, 64, v{D_BA}
    ''')
    for s in (1, 2):
        for t in range(2):
            e(f'v_add_u32 v{D_BA+2*s+t}, {65536*s}, v{D_BA+t}')
    e(f'''
    v_and_b32 v{T}, 31, v1
    s_lshl_b32 s{S_T0}, s{S_RB}, 1
    s_add_u32 s{S_T0}, s{S_T0}, s{S_RT2}
    s_lshl_b32 s{S_T0}, s{S_T0}, 5
    v_add_u32 v{T}, s{S_T0}, v{T}
    v_lshlrev_b32 v{T}, 10, v{T}
    v_lshrrev_b32 v{T+1}, 5, v1
    v_lshl_add_u32 v{T}, v{T+1}, 4, v{T}
    s_lshl_b32 s{S_T0}, s{S_KQ}, 5
    s_add_u32 s{S_T0}, s{S_T0}, s{S_CGD}
    v_add_u32 v{D_XO}, s{S_T0}, v{T}
    ''')
    e.vmem(f'buffer_load_dwordx4 {vr(D_X,4)}, v{D_XO}, {srd(SRD_X)}, 0 offen', 'res')
    steps = [(j, j // 4, j % 4) for j in range(22)] + [(22 + j, 6 + j // 4, j % 4) for j in range(8)]
    DLA = 2
    def rd(i):
        if i >= len(steps): return
        j, u, q = steps[i]
        sel, ib = lds_sel(u % 5)
        for t in range(2):
            for jj in range(2):
                e.lds(f'ds_read_b64_tr_b16 {vr(D_WF+8*(i&3)+4*t+2*jj,2)}, v{D_BA+2*sel+t} offset:{ib+q*8192+jj*1024}', f'd{i}')
    def sync(u):
        e.wait_vm(f'dw{u}')
        e('s_barrier')
        if u >= 2 and u + 3 < 8: d_load(e, u + 3)
    sync(0)
    for i in range(DLA): rd(i)
    for i, (j, u, q) in enumerate(steps):
        ni = i + DLA
        if ni < len(steps) and steps[ni][2] == 0:
            sync(steps[ni][1])
        rd(ni)
        e.wait_lg(f'd{i}')
        e.wait_vm(f'af{j}')
        w = D_WF + 8 * (i & 3)
        e(mfma(D_ACC, w, D_AF + 4 * j, '0' if i == 0 else None))
        e(mfma(D_ACC + 16, w + 4, D_AF + 4 * j, '0' if i == 0 else None))
    e(f'''
    s_lshl_b32 s{S_T0}, s{S_RT2}, 15
    s_lshl_b32 s{S_T1}, s{S_KQ}, 11
    s_add_u32 s{S_T1}, s{S_T1}, s{S_T0}
    v_add_u32 v{T}, s{S_T1}, v{D_L16}
    s_lshl_b32 s{S_T1}, s{S_KQ}, 13
    s_add_u32 s{S_T1}, s{S_T1}, s{S_T0}
    v_add_u32 v{T+1}, s{S_T1}, v{D_L16}
    s_barrier
    s_nop 10
    ''')
    for d in range(4):
        for hh in range(2):
            e(f'ds_write_b128 v{T}, {vr(D_ACC+8*d+4*hh,4)} offset:{d*8192+hh*1024}')
    e('s_waitcnt lgkmcnt(0)')
    e('s_barrier')
    for s in range(4):
        for hh in range(2):
            e(f'ds_read_b128 {vr(32+8*s+4*hh,4)}, v{T+1} offset:{s*2048+hh*1024}')
    e.wait_vm('res')
    for r in range(4):
        e(f'v_lshlrev_b32 v{T+2+2*r}, 16, v{D_X+r}')
        e(f'v_and_b32 v{T+3+2*r}, 0xffff0000, v{D_X+r}')
    for s in range(4):
        e(f's_waitcnt lgkmcnt({6-2*s})')
        for r in range(8):
            e(f'v_add_f32 v{T+2+r}, v{T+2+r}, v{32+8*s+r}')
    for r in range(4):
        e(f'v_cvt_pk_bf16_f32 v{D_X+r}, v{T+2+2*r}, v{T+3+2*r}')
    e(f'buffer_store_dwordx4 {vr(D_X,4)}, v{D_XO}, {srd(SRD_OUT)}, 0 offen')

def kernel(name, phases, nv=256):
    e = Emit()
    e.uid = hash(name) % 1000 * 1000
    end = f'L_end_{name}'
    e(f'.globl {name}\n.p2align 8\n.type {name},@function\n{name}:')
    setup(e, end)
    for ph in phases: ph(e)
    e(f'{end}:\ns_endpgm')
    kd = f'''.amdhsa_kernel {name}
  .amdhsa_next_free_vgpr {nv}
  .amdhsa_next_free_sgpr 96
  .amdhsa_accum_offset {nv}
  .amdhsa_group_segment_fixed_size 0
  .amdhsa_kernarg_size 80
  .amdhsa_user_sgpr_count 2
  .amdhsa_user_sgpr_kernarg_segment_ptr 1
  .amdhsa_system_sgpr_workgroup_id_x 1
.end_amdhsa_kernel
'''
    return e.text(), kd

def build_multi():
    cfg.fused = False
    ks = [('k1_kernel', [phase_ab], 256, 163840), ('k2_kernel', [phase_c], 128, 135168), ('k3_kernel', [phase_d], 256, 163840)]
    head = ''.join(f'; @launch kernel={n} grid=(256,1,1) block=(512,1,1) lds={lds}\n' for n, _, _, lds in ks)
    body, kds = '', ''
    for n, ph, nv, _ in ks:
        t, kd = kernel(n, ph, nv)
        body += t; kds += '.p2align 6\n' + kd
    return head + '.amdgcn_target "amdgcn-amd-amdhsa--gfx950"\n.text\n' + body + '.section .rodata,"a"\n' + kds

if __name__ == '__main__':
    mode = sys.argv[1] if len(sys.argv) > 1 else 'multi'
    out = sys.argv[2] if len(sys.argv) > 2 else f'cdna_kernels/{NAME}.s'
    txt = build_multi()
    open(out, 'w').write(txt)
    print('wrote', out, len(txt), 'bytes')
```

```python
import sys, math
from asmlib import Emit, vr, sr, f32

NAME = 'parallel_sum__mha_block__geglu_ffn__prompt'
QOFF, KOFF, VOFF, A3OFF = 0, 2 << 20, 4 << 20, 6 << 20
NKS = 118
WS_BYTES = A3OFF + 64 * NKS * 1024
OOB = 0x40000000
LOG2E = 1.4426950408889634
SH = 72.0

SRD_X, SRD_WQKV, SRD_WG, SRD_WU, SRD_WD, SRD_WO, SRD_WS, SRD_OUT, SRD_DBG = 8, 12, 16, 20, 24, 28, 32, 36, 40
S_W, S_XCD, S_SLOT, S_I, S_G, S_RT = 44, 45, 46, 47, 48, 49
S_T0, S_T1, S_T2, S_T3 = 50, 51, 52, 53
S_XSO, S_WSO, S_LX, S_LW = 54, 55, 56, 57
S_CG0, S_CG1, S_CG2 = 58, 59, 60
S_HS0, S_HS1, S_HS2 = 61, 62, 63
S_ONES = 84
def srd(b): return sr(b, 4)

class Cfg:
    fused = False
    stamps = False
    @property
    def sc(self): return ' sc1' if self.fused else ''
cfg = Cfg()

STAMP_OFF = 14 << 20
def stamp(e, idx):
    if cfg.stamps:
        e(f's_memrealtime {sr(64+2*idx,2)}')
def stamp_flush(e, kidx):
    if not cfg.stamps: return
    e(f'''
    s_memrealtime s[82:83]
    s_memtime s[92:93]
    s_waitcnt lgkmcnt(0)
    s_mov_b32 s64, s88
    s_sub_u32 s92, s92, s90
    s_lshl_b32 s94, s2, 3
    s_add_u32 s94, s94, s{S_W}
    s_lshl_b32 s94, s94, 6
    s_add_u32 s94, s94, {STAMP_OFF + kidx * 131072}
    v_mov_b32 v2, 0
    ''')
    for i in range(10):
        e(f'v_mov_b32 v3, s{64+2*i}')
        e(f'buffer_store_dword v3, v2, {srd(SRD_WS)}, s94 offen offset:{4*i}')
    e(f'v_mov_b32 v3, s92')
    e(f'buffer_store_dword v3, v2, {srd(SRD_WS)}, s94 offen offset:40')
    if cfg.stamps == 'dbg':
        lab = e.label('nodbg')
        e(f's_add_u32 s94, s2, s{S_W}')
        e(f's_cmp_lg_u32 s94, 0')
        e(f's_cbranch_scc1 {lab}')
        for i in range(1, 10):
            e(f's_sub_u32 s94, s{64+2*i}, s64')
            e(f'v_mov_b32 v3, s94')
            e(f'buffer_store_dword v3, v2, {srd(SRD_DBG)}, 0 offen offset:{4*i}')
        e(f'v_mov_b32 v3, s92')
        e(f'buffer_store_dword v3, v2, {srd(SRD_DBG)}, 0 offen offset:40')
        e(f'{lab}:')

def setup(e, end_label):
    if cfg.stamps:
        e('s_memrealtime s[88:89]')
        e('s_memtime s[90:91]')
    e(f'''
    s_cmp_ge_u32 s2, 256
    s_cbranch_scc1 {end_label}
    s_load_dwordx16 s[64:79], s[0:1], 0
    s_load_dwordx4 s[80:83], s[0:1], 64
    v_lshrrev_b32 v2, 6, v0
    v_and_b32 v1, 63, v0
    s_and_b32 s{S_XCD}, s2, 7
    v_readfirstlane_b32 s{S_W}, v2
    s_lshr_b32 s{S_SLOT}, s2, 3
    s_mov_b32 s{S_ONES}, 0x3f803f80
    ''')
    sizes = {SRD_X: 2097152, SRD_WQKV: 1572864, SRD_WO: 524288, SRD_WG: 1409024, SRD_WU: 1409024, SRD_WD: 1409024,
             SRD_OUT: 2097152, SRD_DBG: 256, SRD_WS: (16 << 20) if cfg.stamps else WS_BYTES}
    for b, sz in sizes.items():
        e(f's_mov_b32 s{b+2}, {sz}')
        e(f's_mov_b32 s{b+3}, 0x00020000')
    e('s_waitcnt lgkmcnt(0)')
    for b, src in {SRD_X: 64, SRD_WQKV: 66, SRD_WO: 68, SRD_WG: 72, SRD_WU: 74, SRD_WD: 76, SRD_OUT: 78, SRD_DBG: 80, SRD_WS: 82}.items():
        e(f's_mov_b64 {sr(b,2)}, {sr(src,2)}')

XF = 128
ACC0, ACC1 = 64, 80
WF = 96
V_XO0, V_XO1, V_WO0, V_WO1 = 2, 3, 4, 5
V_XA = 6
V_WA = 18
V_GO, V_UO = 21, 22
V_BA = 23
V_S0, V_S1, V_SX, V_SQ = 26, 27, 28, 29
V_MU, V_R, V_VE = 30, 31, 32
V_L16 = 33
V_CA, V_CB = 34, 35
V_MF = 36
V_SF0, V_SF1 = 40, 44
V_T = 48
STATS = 2 * 32768 + 28672

def slot_of(n): return n % 5
def lds_sel(slot):
    return slot >> 1, (slot & 1) * 32768

def ab_setup(e):
    e(f'''
    s_and_b32 s{S_T0}, s{S_XCD}, 3
    s_lshl_b32 s{S_T0}, s{S_T0}, 2
    s_and_b32 s{S_T1}, s{S_SLOT}, 3
    s_add_u32 s{S_I}, s{S_T0}, s{S_T1}
    s_lshr_b32 s{S_T0}, s{S_XCD}, 2
    s_lshl_b32 s{S_T0}, s{S_T0}, 3
    s_lshr_b32 s{S_T1}, s{S_SLOT}, 2
    s_add_u32 s{S_G}, s{S_T0}, s{S_T1}
    s_and_b32 s{S_RT}, s{S_W}, 3
    s_lshl_b32 s{S_XSO}, s{S_I}, 17
    s_lshl_b32 s{S_WSO}, s{S_G}, 6
    s_lshl_b32 s{S_LX}, s{S_W}, 11
    s_lshl_b32 s{S_LW}, s{S_W}, 10
    s_add_u32 s{S_LW}, s{S_LW}, 16384
    v_lshlrev_b32 v{V_L16}, 4, v1
    ''')
    T = V_T
    e(f'''
    v_lshrrev_b32 v{T}, 3, v1
    s_lshl_b32 s{S_T0}, s{S_W}, 4
    v_add_u32 v{T}, s{S_T0}, v{T}
    v_lshlrev_b32 v{T}, 10, v{T}
    v_lshrrev_b32 v{T+1}, 4, v1
    v_xor_b32 v{T+1}, v{T+1}, v1
    v_and_b32 v{T+1}, 7, v{T+1}
    v_lshl_add_u32 v{V_XO0}, v{T+1}, 4, v{T}
    v_xor_b32 v{V_XO1}, 64, v{V_XO0}
    v_add_u32 v{V_XO1}, 8192, v{V_XO1}
    ''')
    for dst, add in ((V_WO0, 0), (V_WO1, 512)):
        e(f'''
        v_add_u32 v{T}, {add}, v0
        v_mul_u32_u24 v{T+1}, 43691, v{T}
        v_lshrrev_b32 v{T+1}, 19, v{T+1}
        v_mul_u32_u24 v{T+2}, 12, v{T+1}
        v_sub_u32 v{T+2}, v{T}, v{T+2}
        v_and_b32 v{T+3}, 1, v{T+2}
        v_lshlrev_b32 v{T+3}, 4, v{T+3}
        v_bfe_u32 v{T+4}, v{T+2}, 1, 1
        v_lshl_add_u32 v{T+3}, v{T+4}, 10, v{T+3}
        v_lshrrev_b32 v{T+4}, 2, v{T+2}
        v_lshl_add_u32 v{T+3}, v{T+4}, 5, v{T+3}
        v_lshlrev_b32 v{T+4}, 4, v{T+2}
        v_add_u32 v{T+4}, 1920, v{T+4}
        v_cmp_le_u32 vcc, 8, v{T+2}
        v_mul_u32_u24 v{T+1}, 3072, v{T+1}
        s_nop 1
        v_cndmask_b32 v{T+3}, v{T+3}, v{T+4}, vcc
        v_add_u32 v{dst}, v{T+1}, v{T+3}
        ''')

def ab_setup2(e):
    T = V_T
    e(f'''
    v_and_b32 v{T}, 31, v1
    s_lshl_b32 s{S_T0}, s{S_RT}, 5
    v_add_u32 v{T}, s{S_T0}, v{T}
    v_lshrrev_b32 v{T+1}, 1, v{T}
    v_lshrrev_b32 v{T+2}, 5, v1
    v_xor_b32 v{T+1}, v{T+1}, v{T+2}
    v_and_b32 v{T+1}, 7, v{T+1}
    v_lshlrev_b32 v{T+1}, 4, v{T+1}
    v_lshl_add_u32 v{V_XA}, v{T}, 7, v{T+1}
    ''')
    for ks in range(1, 4):
        e(f'v_xor_b32 v{V_XA+ks}, {32*ks}, v{V_XA}')
    for s in (1, 2):
        for ks in range(4):
            e(f'v_add_u32 v{V_XA+4*s+ks}, {65536*s}, v{V_XA+ks}')
    e(f'''
    v_lshrrev_b32 v{T}, 5, v1
    v_lshlrev_b32 v{T}, 3, v{T}
    v_bfe_u32 v{T+1}, v1, 2, 2
    v_add_u32 v{T}, v{T}, v{T+1}
    v_bfe_u32 v{T+2}, v1, 4, 1
    v_and_b32 v{T+3}, 3, v1
    v_lshlrev_b32 v{T+3}, 3, v{T+3}
    v_mul_u32_u24 v{T+4}, 192, v{T}
    v_lshl_add_u32 v{T+4}, v{T+2}, 5, v{T+4}
    v_add_u32 v{T+4}, v{T+4}, v{T+3}
    v_add_u32 v{V_WA}, 16384, v{T+4}
    v_add_u32 v{V_WA+1}, {16384+65536}, v{T+4}
    v_add_u32 v{V_WA+2}, {16384+131072}, v{T+4}
    ''')
    e(f'''
    s_lshr_b32 s{S_T0}, s{S_W}, 2
    v_xor_b32 v{T+4}, s{S_T0}, v{T+2}
    v_lshlrev_b32 v{T+4}, 5, v{T+4}
    v_lshl_add_u32 v{T+4}, v{T+2}, 14, v{T+4}
    v_lshl_add_u32 v{T+4}, v{T}, 6, v{T+4}
    v_add_u32 v{V_BA}, v{T+4}, v{T+3}
    v_add_u32 v{V_BA+1}, 65536, v{V_BA}
    v_add_u32 v{V_BA+2}, 131072, v{V_BA}
    ''')
    e(f'''
    v_lshrrev_b32 v{T}, 2, v1
    s_lshl_b32 s{S_T0}, s{S_W}, 5
    v_add_u32 v{T}, s{S_T0}, v{T}
    v_mul_u32_u24 v{T}, 2752, v{T}
    v_and_b32 v{T+1}, 3, v1
    v_lshl_add_u32 v{V_GO}, v{T+1}, 4, v{T}
    v_xor_b32 v{V_UO}, 32, v{V_GO}
    ''')
    e(f'''
    s_mul_i32 s{S_T0}, s{S_G}, 3
    s_lshl_b32 s{S_T1}, s{S_G}, 1
    s_add_u32 s{S_T1}, s{S_T1}, 11
    s_cmp_lt_u32 s{S_G}, 11
    s_cselect_b32 s{S_T0}, s{S_T0}, s{S_T1}
    s_cselect_b32 s{S_T2}, 0, {OOB}
    s_lshl_b32 s{S_CG0}, s{S_T0}, 6
    s_add_u32 s{S_CG1}, s{S_CG0}, 64
    s_add_u32 s{S_CG2}, s{S_CG0}, 128
    s_add_u32 s{S_CG2}, s{S_CG2}, s{S_T2}
    s_lshl_b32 s{S_T1}, s{S_I}, 2
    s_add_u32 s{S_T1}, s{S_T1}, s{S_RT}
    s_mul_i32 s{S_T1}, s{S_T1}, {NKS}
    s_lshl_b32 s{S_T0}, s{S_T0}, 1
    s_add_u32 s{S_T1}, s{S_T1}, s{S_T0}
    s_lshr_b32 s{S_T0}, s{S_W}, 2
    s_add_u32 s{S_T1}, s{S_T1}, s{S_T0}
    s_add_u32 s{S_T1}, s{S_T1}, 32
    s_lshl_b32 s{S_T1}, s{S_T1}, 10
    s_add_u32 s{S_HS0}, s{S_T1}, {A3OFF}
    s_add_u32 s{S_HS1}, s{S_HS0}, 2048
    s_add_u32 s{S_HS2}, s{S_HS0}, 4096
    s_add_u32 s{S_HS2}, s{S_HS2}, s{S_T2}
    ''')
    for r in list(range(ACC0, ACC0 + 32)) + [V_S0, V_S1, V_SX, V_SQ, V_MF + 2, V_MF + 3, V_SF0 + 2, V_SF0 + 3, V_SF1 + 2, V_SF1 + 3]:
        e(f'v_mov_b32 v{r}, 0')

def dma(e, voff, srdb, soff, tag, extra=''):
    e.vmem(f'buffer_load_dwordx4 v{voff}, {srd(srdb)}, s{soff} offen lds{extra}', tag)

def ab_load(e, n, low):
    base = slot_of(n) * 32768
    tag = f'ld{n}'
    if n < 8:
        e(f's_add_u32 m0, s{S_LX}, {base}')
        e(f's_add_u32 s{S_T0}, s{S_XSO}, {n*128}')
        dma(e, V_XO0, SRD_X, S_T0, tag)
        e(f's_add_u32 m0, s{S_LX}, {base+1024}')
        e(f's_add_u32 s{S_T1}, s{S_WSO}, {n*64*3072}')
        dma(e, V_XO1, SRD_X, S_T0, tag)
        e(f's_add_u32 m0, s{S_LW}, {base}')
        e('s_nop 0')
        dma(e, V_WO0, SRD_WQKV, S_T1, tag)
        if low:
            e(f's_add_u32 m0, s{S_LW}, {base+8192}')
            e('s_nop 0')
            dma(e, V_WO1, SRD_WQKV, S_T1, tag)
    else:
        u = n - 8
        cg = (S_CG0, S_CG1, S_CG2)[u >> 1]
        k0 = (u & 1) * 256 * 2752
        e(f's_add_u32 m0, s{S_LX}, {base}')
        e(f's_add_u32 s{S_T0}, s{cg}, {k0}')
        dma(e, V_GO, SRD_WG, S_T0, tag)
        e(f's_add_u32 m0, s{S_LX}, {base+16384}')
        e(f's_add_u32 s{S_T1}, s{cg}, {k0+16*2752}')
        dma(e, V_UO, SRD_WU, S_T0, tag)
        e(f's_add_u32 m0, s{S_LX}, {base+1024}')
        e('s_nop 0')
        dma(e, V_GO, SRD_WG, S_T1, tag)
        e(f's_add_u32 m0, s{S_LX}, {base+16384+1024}')
        e('s_nop 0')
        dma(e, V_UO, SRD_WU, S_T1, tag)

def mfma(d, a, b, c=None):
    c = vr(d, 16) if c is None else c
    return f'v_mfma_f32_32x32x16_bf16 {vr(d,16)}, {vr(a,4)}, {vr(b,4)}, {c}'

def split_frag(e, dst, src, tmp):
    e(f'''
    v_cvt_pk_bf16_f32 v{dst}, v{src}, v{src}
    v_and_b32 v{tmp}, 0xffff0000, v{dst}
    v_sub_f32 v{tmp}, v{src}, v{tmp}
    v_cvt_pk_bf16_f32 v{dst+1}, v{tmp}, v{tmp}
    ''')

def mu_frag(e):
    T = V_T
    e(f'''
    v_sub_f32 v{T}, 0, v{V_MU}
    v_cvt_pk_bf16_f32 v{T+1}, v{T}, v{T}
    v_and_b32 v{T+1}, 0xffff0000, v{T+1}
    v_sub_f32 v{T+1}, v{T}, v{T+1}
    v_cvt_pk_bf16_f32 v{V_MF}, v{T}, v{T+1}
    v_cvt_pk_bf16_f32 v{V_MF+1}, v{T}, v{T+1}
    ''')

def phase_a_path(e, low):
    T = V_T
    for n in range(5):
        ab_load(e, n, low)
    stamp(e, 1)
    ab_setup2(e)
    ntile = 2 if low else 1
    for c in range(8):
        e.comment(f'--- phase A chunk {c}')
        e.wait_vm(f'ld{c}')
        e('s_barrier')
        if c == 0: stamp(e, 2)
        if c == 4: stamp(e, 3)
        if c == 7: stamp(e, 4)
        sel, ib = lds_sel(slot_of(c))
        for ks in range(4):
            e.lds(f'ds_read_b128 {vr(XF+16*c+4*ks,4)}, v{V_XA+4*sel+ks} offset:{ib}', f'k{ks}')
            for t in range(ntile):
                tile = t if low else 2
                for jj in range(2):
                    e.lds(f'ds_read_b64_tr_b16 {vr(WF+8*ks+4*t+2*jj,2)}, v{V_WA+sel} offset:{ib+(16*ks+4*jj)*192+tile*64}', f'k{ks}')
        if c >= 1:
            ab_load(e, c + 4, low)
        for ks in range(4):
            e.wait_lg(f'k{ks}')
            x = XF + 16 * c + 4 * ks
            if low:
                e(mfma(ACC0, WF + 8 * ks, x))
                for j in range(4):
                    e(f'v_dot2_f32_bf16 v{V_S0}, v{WF+8*ks+j}, s{S_ONES}, v{V_S0}')
                e(mfma(ACC1, WF + 8 * ks + 4, x))
                for j in range(4):
                    e(f'v_dot2_f32_bf16 v{V_S1}, v{WF+8*ks+4+j}, s{S_ONES}, v{V_S1}')
            else:
                e(mfma(ACC0, x, WF + 8 * ks))
                for j in range(4):
                    e(f'v_dot2_f32_bf16 v{V_S0}, v{WF+8*ks+j}, s{S_ONES}, v{V_S0}')
                    e(f'v_dot2_f32_bf16 v{V_SX}, v{x+j}, s{S_ONES}, v{V_SX}')
                    e(f'v_dot2_f32_bf16 v{V_SQ}, v{x+j}, v{x+j}, v{V_SQ}')
    stamp(e, 5)
    e(f'''
    v_and_b32 v{T+8}, 31, v1
    s_lshl_b32 s{S_T0}, s{S_RT}, 5
    v_add_u32 v{T+8}, s{S_T0}, v{T+8}
    v_lshlrev_b32 v{T+8}, 2, v{T+8}
    v_add_u32 v{T+8}, {STATS}, v{T+8}
    ''')
    if not low:
        e(f'''
        s_nop 1
        v_mov_b32 v{T}, v{V_SX}
        v_mov_b32 v{T+1}, v{V_SQ}
        s_nop 1
        v_permlane32_swap_b32 v{V_SX}, v{T}
        v_permlane32_swap_b32 v{V_SQ}, v{T+1}
        s_nop 1
        v_add_f32 v{V_SX}, v{V_SX}, v{T}
        v_add_f32 v{V_SQ}, v{V_SQ}, v{T+1}
        v_mul_f32 v{V_MU}, {f32(1/512)}, v{V_SX}
        v_mul_f32 v{V_SQ}, {f32(1/512)}, v{V_SQ}
        v_fma_f32 v{V_VE}, -v{V_MU}, v{V_MU}, v{V_SQ}
        v_max_f32 v{V_VE}, 0, v{V_VE}
        v_add_f32 v{V_VE}, {f32(1e-5)}, v{V_VE}
        v_rsq_f32 v{V_R}, v{V_VE}
        ds_write_b32 v{T+8}, v{V_MU}
        ds_write_b32 v{T+8}, v{V_VE} offset:1024
        ds_write_b32 v{T+8}, v{V_R} offset:512
        ''')
        split_frag(e, V_SF0, V_S0, T + 2)
        mu_frag(e)
        e.wait_lg_all()
        e.wait_vm('ld8')
        e('s_barrier')
        e(f'''
        v_lshrrev_b32 v{T+9}, 5, v1
        v_lshlrev_b32 v{T+9}, 4, v{T+9}
        s_lshl_b32 s{S_T0}, s{S_RT}, 7
        s_add_u32 s{S_T0}, s{S_T0}, {STATS+512}
        v_add_u32 v{T+9}, s{S_T0}, v{T+9}
        ''')
        e(mfma(ACC0, V_MF, V_SF0))
        for i in range(4):
            e(f'ds_read_b128 {vr(WF+4*i,4)}, v{T+9} offset:{32*i}')
        e(f'''
        v_bfe_u32 v{T}, v1, 4, 1
        v_lshlrev_b32 v{T}, 16, v{T}
        v_lshrrev_b32 v{T+1}, 5, v1
        v_lshl_add_u32 v{T}, v{T+1}, 8, v{T}
        v_and_b32 v{T+1}, 15, v1
        v_lshl_add_u32 v{T}, v{T+1}, 4, v{T}
        s_lshl_b32 s{S_T0}, s{S_G}, 7
        s_lshl_b32 s{S_T1}, s{S_I}, 2
        s_add_u32 s{S_T0}, s{S_T0}, s{S_T1}
        s_add_u32 s{S_T0}, s{S_T0}, s{S_RT}
        s_lshl_b32 s{S_T0}, s{S_T0}, 10
        s_add_u32 s{S_T0}, s{S_T0}, {VOFF}
        s_nop 7
        s_waitcnt lgkmcnt(0)
        ''')
        for r in range(16):
            e(f'v_mul_f32 v{ACC0+r}, v{ACC0+r}, v{WF+r}')
        for r in range(8):
            e(f'v_cvt_pk_bf16_f32 v{WF+16+r}, v{ACC0+2*r}, v{ACC0+2*r+1}')
        e.vmem(f'buffer_store_dwordx4 {vr(WF+16,4)}, v{T}, {srd(SRD_WS)}, s{S_T0} offen{cfg.sc}', 'qkv')
        e.vmem(f'buffer_store_dwordx4 {vr(WF+20,4)}, v{T}, {srd(SRD_WS)}, s{S_T0} offen offset:512{cfg.sc}', 'qkv')
    else:
        e('s_nop 2')
        split_frag(e, V_SF0, V_S0, T + 2)
        split_frag(e, V_SF1, V_S1, T + 3)
        e.wait_vm('ld8')
        e('s_barrier')
        e(f'''
        ds_read_b32 v{V_MU}, v{T+8}
        ds_read_b32 v{V_R}, v{T+8} offset:512
        ds_read_b32 v{V_VE}, v{T+8} offset:1024
        s_lshl_b32 s{S_T0}, s{S_G}, 7
        s_lshl_b32 s{S_T1}, s{S_I}, 2
        s_add_u32 s{S_T0}, s{S_T0}, s{S_T1}
        s_add_u32 s{S_T0}, s{S_T0}, s{S_RT}
        s_lshl_b32 s{S_T0}, s{S_T0}, 10
        s_add_u32 s{S_T1}, s{S_T0}, {KOFF}
        s_add_u32 s{S_T2}, s{S_T0}, 65536
        s_add_u32 s{S_T3}, s{S_T1}, 65536
        s_waitcnt lgkmcnt(0)
        ''')
        mu_frag(e)
        e(f'v_mul_f32 v{T+4}, {f32(0.25*LOG2E)}, v{V_R}')
        e('s_nop 0')
        e(mfma(ACC0, V_SF0, V_MF))
        e(mfma(ACC1, V_SF1, V_MF))
        e('s_nop 12')
        for t, acc in enumerate((ACC0, ACC1)):
            for r in range(16):
                e(f'v_mul_f32 v{acc+r}, v{acc+r}, v{T+4 if r < 8 else V_R}')
            for r in range(8):
                e(f'v_cvt_pk_bf16_f32 v{WF+8*t+r}, v{acc+2*r}, v{acc+2*r+1}')
            e.vmem(f'buffer_store_dwordx4 {vr(WF+8*t,4)}, v{V_L16}, {srd(SRD_WS)}, s{(S_T0,S_T2)[t]} offen{cfg.sc}', 'qkv')
            e.vmem(f'buffer_store_dwordx4 {vr(WF+8*t+4,4)}, v{V_L16}, {srd(SRD_WS)}, s{(S_T1,S_T3)[t]} offen{cfg.sc}', 'qkv')
    assert QOFF == 0

C0 = -2.0 * LOG2E * math.sqrt(2.0 / math.pi)
C1 = C0 * 0.044715
LA = 3
BWF = 112
HP = 96
def b_epilogue(acc, sreg, sfrag, hs):
    T = V_T
    L = []
    L += ['s_nop 2',
          f'v_cvt_pk_bf16_f32 v{sfrag}, v{sreg}, v{sreg}',
          f'v_and_b32 v{T}, 0xffff0000, v{sfrag}',
          f'v_sub_f32 v{T}, v{sreg}, v{T}',
          f'v_cvt_pk_bf16_f32 v{sfrag+1}, v{T}, v{T}',
          f'v_mov_b32 v{sreg}, 0',
          's_nop 0',
          mfma(acc, sfrag, V_MF),
          'WAIT12']
    for j in range(8): L.append(f'v_mul_f32 v{T+j}, v{acc+j}, v{acc+j}')
    for j in range(8): L.append(f'v_fma_f32 v{T+j}, v{T+j}, v{V_CA}, v{V_CB}')
    for j in range(8): L.append(f'v_mul_f32 v{T+j}, v{T+j}, v{acc+j}')
    for j in range(8): L.append(f'v_exp_f32 v{T+j}, v{T+j}')
    for j in range(8): L.append(f'v_mul_f32 v{T+8+j}, v{acc+j}, v{acc+8+j}')
    for j in range(8): L.append(f'v_fma_f32 v{T+j}, v{T+j}, v{V_VE}, v{V_VE}')
    for j in range(8): L.append(f'v_rcp_f32 v{T+j}, v{T+j}')
    L.append('s_nop 0')
    for j in range(8): L.append(f'v_mul_f32 v{T+j}, v{T+j}, v{T+8+j}')
    for j in range(4): L.append(f'v_cvt_pk_bf16_f32 v{HP+j}, v{T+2*j}, v{T+2*j+1}')
    L.append(('vmem', f'buffer_store_dwordx4 {vr(HP,4)}, v{V_L16}, {srd(SRD_WS)}, s{hs} offen{cfg.sc}', 'hst'))
    return L

def emit_item(e, it):
    if isinstance(it, tuple): e.vmem(it[1], it[2])
    else: e(it)

def phase_b(e):
    e.comment('=== phase B')
    stamp(e, 6)
    e(f'''
    v_mul_f32 v{V_CB}, {f32(C0)}, v{V_R}
    v_mul_f32 v{V_CA}, v{V_R}, v{V_R}
    v_mul_f32 v{V_CA}, v{V_CA}, v{V_R}
    v_mul_f32 v{V_CA}, {f32(C1)}, v{V_CA}
    v_mov_b32 v{V_S0}, 0
    v_mov_b32 v{V_S1}, 0
    ''')
    def rd(kg):
        if kg >= 96: return
        u = kg >> 4
        sel, ib = lds_sel(slot_of(8 + u))
        for jj in range(2):
            e.lds(f'ds_read_b64_tr_b16 {vr(BWF+4*(kg&3)+2*jj,2)}, v{V_BA+sel} offset:{ib+1024*(kg&15)+256*jj}', f'b{kg}')
    for kg in range(LA): rd(kg)
    fill = []
    hold = 0
    for kg in range(96):
        p, kk = kg >> 5, kg & 31
        acc = (ACC0, ACC1)[p & 1]
        sreg = (V_S0, V_S1)[p & 1]
        nk = kg + LA
        if nk < 96 and (nk & 15) == 0:
            n = 8 + (nk >> 4)
            e.wait_vm(f'ld{n}')
            if n == 9 and cfg.fused:
                e.wait_vm('qkv')
            e('s_barrier')
            if n == 9:
                if cfg.fused: signal(e, 1)
                ab_load(e, 12, True)
            if n == 10: ab_load(e, 13, True)
        rd(nk)
        e.wait_lg(f'b{kg}')
        w = BWF + 4 * (kg & 3)
        e(mfma(acc, w, XF + 4 * kk, '0' if kk == 0 else None))
        for j in range(4):
            e(f'v_dot2_f32_bf16 v{sreg}, v{w+j}, s{S_ONES}, v{sreg}')
        if hold > 0:
            hold -= 1
        else:
            cnt = 0
            while fill and cnt < 4:
                it = fill.pop(0)
                if it == 'WAIT12':
                    hold = 2
                    break
                emit_item(e, it); cnt += 1
        if kk == 31:
            if p < 2: stamp(e, 7 + p)
            assert not fill
            fill = b_epilogue(acc, sreg, (V_SF0, V_SF1)[p & 1], (S_HS0, S_HS1, S_HS2)[p])
    for it in fill:
        if it == 'WAIT12': e('s_nop 12')
        else: emit_item(e, it)

def phase_ab(e):
    ab_setup(e)
    lhi, lb = e.label('a_hi'), e.label('b')
    e(f's_cmp_ge_u32 s{S_W}, 4')
    e(f's_cbranch_scc1 {lhi}')
    vm0 = list(e.vm)
    phase_a_path(e, True)
    vm_low = list(e.vm)
    e(f's_branch {lb}')
    e(f'{lhi}:')
    e.vm = list(vm0); e.lg = []
    phase_a_path(e, False)
    vm_hi = list(e.vm)
    e(f'{lb}:')
    e.vm = vm_hi if len(vm_hi) <= len(vm_low) else vm_low
    assert [t for t in vm_hi if t != 'qkv'] == [t for t in vm_low if t != 'qkv'], (vm_hi, vm_low)
    phase_b(e)

S_HEAD, S_QB, S_FB, S_IT, S_SYNC = 54, 55, 56, 57, 58
S_VM = 86
C_Q = 4
C_KA, C_VA = 2, 3
C_K = 8
C_V = 16
C_C = 32
C_S = 48
C_P = 80
C_O = 96
C_T = 112
C_L16 = 88

def phase_c(e):
    T = C_T
    e(f'''
    s_lshl_b32 s{S_HEAD}, s{S_XCD}, 2
    s_and_b32 s{S_T0}, s{S_SLOT}, 3
    s_add_u32 s{S_HEAD}, s{S_HEAD}, s{S_T0}
    s_lshr_b32 s{S_QB}, s{S_SLOT}, 2
    v_lshlrev_b32 v{C_L16}, 4, v1
    s_lshl_b32 s{S_T0}, s{S_HEAD}, 6
    s_add_u32 s{S_T0}, s{S_T0}, s{S_W}
    s_lshl_b32 s{S_T1}, s{S_QB}, 3
    s_add_u32 s{S_T1}, s{S_T1}, s{S_T0}
    s_lshl_b32 s{S_T1}, s{S_T1}, 10
    s_lshl_b32 s{S_T0}, s{S_T0}, 10
    s_lshl_b32 s{S_T3}, s{S_W}, 11
    ''')
    e.vmem(f'buffer_load_dwordx4 {vr(C_Q,4)}, v{C_L16}, {srd(SRD_WS)}, s{S_T1} offen{cfg.sc}', 'q')
    for j in range(8):
        e(f's_add_u32 m0, s{S_T3}, {j*16384}')
        e(f's_add_u32 s{S_T2}, s{S_T0}, {KOFF + j*8192}')
        dma(e, C_L16, SRD_WS, S_T2, f'kv{j}', cfg.sc)
        e(f's_add_u32 m0, s{S_T3}, {j*16384+1024}')
        e(f's_add_u32 s{S_T2}, s{S_T0}, {VOFF + j*8192}')
        dma(e, C_L16, SRD_WS, S_T2, f'kv{j}', cfg.sc)
    e(f'''
    s_mov_b32 s{S_VM}, 0x0000ffff
    s_mov_b32 s{S_VM+1}, 0x0000ffff
    s_mov_b32 s{S_FB}, 0
    s_mov_b32 s{S_SYNC}, 1
    ''')
    stamp(e, 1)
    for r in range(16): e(f'v_mov_b32 v{C_V+r}, s{S_ONES}')
    e.wait_vm('kv0')
    e('s_barrier')
    stamp(e, 2)
    e(f'''
    ds_read_b128 {vr(C_K,4)}, v{C_L16}
    ds_read_b128 {vr(C_K+4,4)}, v{C_L16} offset:2048
    s_waitcnt lgkmcnt(1)
    {mfma(C_S, C_K, C_Q, '0')}
    s_waitcnt lgkmcnt(0)
    {mfma(C_S+16, C_K+4, C_Q, '0')}
    s_nop 11
    v_max3_f32 v{T}, v{C_S}, v{C_S+1}, v{C_S+2}
    ''')
    for r in range(3, 31, 2):
        e(f'v_max3_f32 v{T}, v{T}, v{C_S+r}, v{C_S+r+1}')
    e(f'''
    v_max_f32 v{T}, v{T}, v{C_S+31}
    v_add_f32 v{T}, {f32(SH)}, v{T}
    ''')
    lrun, lloop, lnosync, lfb, lfbl, ldone = (e.label(x) for x in ('c_run', 'c_loop', 'c_nosync', 'c_fb', 'c_fbl', 'c_done'))
    e(f'{lrun}:')
    e(f'''
    v_mov_b32 v{T+1}, v{T}
    s_nop 1
    v_permlane32_swap_b32 v{T}, v{T+1}
    s_nop 1
    v_max_f32 v{T}, v{T}, v{T+1}
    v_sub_f32 v{T}, 0, v{T}
    ''')
    for r in range(16): e(f'v_mov_b32 v{C_C+r}, v{T}')
    for r in range(16): e(f'v_mov_b32 v{C_O+r}, 0')
    e(f'''
    v_mov_b32 v{C_KA}, v{C_L16}
    v_lshrrev_b32 v{C_VA}, 5, v1
    v_lshlrev_b32 v{C_VA}, 8, v{C_VA}
    v_and_b32 v{T+1}, 15, v1
    v_lshl_add_u32 v{C_VA}, v{T+1}, 4, v{C_VA}
    ds_read_b128 {vr(C_K,4)}, v{C_KA}
    ds_read_b128 {vr(C_K+4,4)}, v{C_KA} offset:2048
    s_mov_b64 exec, {sr(S_VM,2)}
    ds_read_b128 {vr(C_V,4)}, v{C_VA} offset:1024
    ds_read_b128 {vr(C_V+4,4)}, v{C_VA} offset:1536
    s_mov_b64 exec, -1
    s_mov_b32 s{S_IT}, 0
    s_waitcnt lgkmcnt(3)
    {mfma(C_S, C_K, C_Q, vr(C_C,16))}
    s_nop 7
    .p2align 6
    {lloop}:
    ''')
    for t in range(8):
        S, S2 = C_S + 16 * (t & 1), C_S + 16 * ((t + 1) & 1)
        Kn, Knn = C_K + 4 * ((t + 1) & 1), C_K + 4 * (t & 1)
        V, Vn = C_V + 8 * (t & 1), C_V + 8 * ((t + 1) & 1)
        if t == 6:
            e(f'''
            s_cmp_eq_u32 s{S_SYNC}, 0
            s_cbranch_scc1 {lnosync}
            ''')
            stamp(e, 3)
            e(f'''
            s_waitcnt vmcnt(0)
            s_barrier
            s_mov_b32 s{S_SYNC}, 0
            ''')
            stamp(e, 4)
            e(f'{lnosync}:')
        e(f'ds_read_b128 {vr(Knn,4)}, v{C_KA} offset:{(t+2)*2048}')
        e(f's_mov_b64 exec, {sr(S_VM,2)}')
        e(f'ds_read_b128 {vr(Vn,4)}, v{C_VA} offset:{(t+1)*2048+1024}')
        e(f'ds_read_b128 {vr(Vn+4,4)}, v{C_VA} offset:{(t+1)*2048+1536}')
        e('s_mov_b64 exec, -1')
        for r in range(3): e(f'v_exp_f32 v{S+r}, v{S+r}')
        e('s_waitcnt lgkmcnt(5)')
        e(mfma(S2, Kn, C_Q, vr(C_C, 16)))
        for r in range(3, 8): e(f'v_exp_f32 v{S+r}, v{S+r}')
        for r in range(3): e(f'v_cvt_pk_bf16_f32 v{C_P+r}, v{S+2*r}, v{S+2*r+1}')
        e(f'v_exp_f32 v{S+8}, v{S+8}')
        e(f'v_cvt_pk_bf16_f32 v{C_P+3}, v{S+6}, v{S+7}')
        for r in range(9, 11): e(f'v_exp_f32 v{S+r}, v{S+r}')
        e('s_waitcnt lgkmcnt(3)')
        e(mfma(C_O, V, C_P))
        for r in range(11, 16): e(f'v_exp_f32 v{S+r}, v{S+r}')
        for r in range(4, 8): e(f'v_cvt_pk_bf16_f32 v{C_P+r}, v{S+2*r}, v{S+2*r+1}')
        if t == 7:
            e(f'v_add_u32 v{C_KA}, 16384, v{C_KA}')
            e(f'v_add_u32 v{C_VA}, 16384, v{C_VA}')
        else:
            e('s_nop 1')
        e(mfma(C_O, V + 4, C_P + 4))
    e(f'''
    s_add_u32 s{S_IT}, s{S_IT}, 1
    s_cmp_lt_u32 s{S_IT}, 8
    s_cbranch_scc1 {lloop}
    s_waitcnt lgkmcnt(0)
    s_nop 12
    ''')
    e.vm = []
    stamp(e, 5)
    e(f'v_mul_f32 v{T}, 0, v{C_O}')
    for r in range(1, 9): e(f'v_fma_f32 v{T}, v{C_O+r}, 0, v{T}')
    e(f'''
    v_cmp_u_f32 vcc, v{T}, v{T}
    s_cmp_lg_u32 s{S_FB}, 0
    s_cbranch_scc1 {ldone}
    s_nop 3
    s_cbranch_vccz {ldone}
    {lfb}:
    s_mov_b32 s{S_FB}, 1
    s_mov_b32 s{S_IT}, 0
    v_mov_b32 v{C_KA}, v{C_L16}
    v_mov_b32 v{T}, 0xff800000
    {lfbl}:
    ds_read_b128 {vr(C_K,4)}, v{C_KA}
    v_add_u32 v{C_KA}, 2048, v{C_KA}
    s_waitcnt lgkmcnt(0)
    {mfma(C_S, C_K, C_Q, '0')}
    s_nop 15
    ''')
    for r in range(0, 16, 2):
        e(f'v_max3_f32 v{T}, v{T}, v{C_S+r}, v{C_S+r+1}')
    e(f'''
    s_add_u32 s{S_IT}, s{S_IT}, 1
    s_cmp_lt_u32 s{S_IT}, 64
    s_cbranch_scc1 {lfbl}
    s_branch {lrun}
    {ldone}:
    v_rcp_f32 v{T}, v{C_O+8}
    s_lshl_b32 s{S_T0}, s{S_QB}, 3
    s_add_u32 s{S_T0}, s{S_T0}, s{S_W}
    s_mul_i32 s{S_T0}, s{S_T0}, {NKS}
    s_add_u32 s{S_T0}, s{S_T0}, s{S_HEAD}
    s_lshl_b32 s{S_T0}, s{S_T0}, 10
    s_add_u32 s{S_T0}, s{S_T0}, {A3OFF}
    ''')
    for r in range(8): e(f'v_mul_f32 v{C_O+r}, v{C_O+r}, v{T}')
    for r in range(4): e(f'v_cvt_pk_bf16_f32 v{C_P+r}, v{C_O+2*r}, v{C_O+2*r+1}')
    e.vmem(f'buffer_store_dwordx4 {vr(C_P,4)}, v{C_L16}, {srd(SRD_WS)}, s{S_T0} offen{cfg.sc}', 'ost')

S_RB, S_CGD, S_KQ, S_RT2, S_AB, S_LD = 54, 55, 56, 57, 58, 59
D_AF = 128
D_ACC = 64
D_WF = 96
D_WO, D_L16, D_XO = 2, 3, 4
D_BA = 5
D_X = 12
D_T = 16
D_RED = 32
def d_load(e, u):
    base = (u % 5) * 32768
    s, r0 = (SRD_WD, 256 * u) if u < 6 else (SRD_WO, 256 * (u - 6))
    for j in range(4):
        e(f's_add_u32 m0, s{S_LD}, {base + j*1024}')
        e(f's_add_u32 s{S_T0}, s{S_CGD}, {(r0 + 8*j)*1024}')
        dma(e, D_WO, s, S_T0, f'dw{u}')

def phase_d(e):
    T = D_T
    e(f'''
    s_lshl_b32 s{S_RB}, s{S_XCD}, 2
    s_and_b32 s{S_T0}, s{S_SLOT}, 3
    s_add_u32 s{S_RB}, s{S_RB}, s{S_T0}
    s_lshr_b32 s{S_CGD}, s{S_SLOT}, 2
    s_lshl_b32 s{S_CGD}, s{S_CGD}, 7
    s_and_b32 s{S_KQ}, s{S_W}, 3
    s_lshr_b32 s{S_RT2}, s{S_W}, 2
    s_lshl_b32 s{S_LD}, s{S_W}, 12
    v_lshlrev_b32 v{D_L16}, 4, v1
    v_lshrrev_b32 v{T}, 3, v1
    s_lshl_b32 s{S_T0}, s{S_W}, 5
    v_add_u32 v{T}, s{S_T0}, v{T}
    v_lshlrev_b32 v{T}, 10, v{T}
    v_bfe_u32 v{T+1}, v1, 4, 1
    v_lshlrev_b32 v{T+1}, 2, v{T+1}
    v_xor_b32 v{T+1}, v{T+1}, v1
    v_and_b32 v{T+1}, 7, v{T+1}
    v_lshl_add_u32 v{D_WO}, v{T+1}, 4, v{T}
    s_lshl_b32 s{S_AB}, s{S_RB}, 1
    s_add_u32 s{S_AB}, s{S_AB}, s{S_RT2}
    s_mul_i32 s{S_AB}, s{S_AB}, {NKS}
    s_add_u32 s{S_AB}, s{S_AB}, s{S_KQ}
    s_lshl_b32 s{S_AB}, s{S_AB}, 10
    s_add_u32 s{S_AB}, s{S_AB}, {A3OFF}
    ''')
    def a_load(j):
        if j < 22:
            off = (32 + 4 * j) * 1024
            e(f's_add_u32 s{S_T1}, s{S_AB}, {off}')
            if j == 21:
                e(f's_cmp_lt_u32 s{S_KQ}, 2')
                e(f's_cselect_b32 s{S_T1}, s{S_T1}, {OOB}')
        else:
            e(f's_add_u32 s{S_T1}, s{S_AB}, {4*(j-22)*1024}')
        e.vmem(f'buffer_load_dwordx4 {vr(D_AF+4*j,4)}, v{D_L16}, {srd(SRD_WS)}, s{S_T1} offen{cfg.sc}', f'af{j}')
    for u in range(5):
        d_load(e, u)
        for j in range(4 * u, 4 * u + 4): a_load(j)
    a_load(20); a_load(21)
    if not cfg.fused:
        for j in range(22, 30): a_load(j)
    e(f'''
    v_lshrrev_b32 v{T}, 5, v1
    v_lshlrev_b32 v{T}, 2, v{T}
    v_bfe_u32 v{T+1}, v1, 2, 2
    v_add_u32 v{T}, v{T}, v{T+1}
    s_lshl_b32 s{S_T0}, s{S_KQ}, 4
    v_add_u32 v{T}, s{S_T0}, v{T}
    v_lshlrev_b32 v{T}, 7, v{T}
    v_bfe_u32 v{T+2}, v1, 4, 1
    v_lshl_add_u32 v{T}, v{T+2}, 5, v{T}
    v_and_b32 v{T+2}, 1, v1
    v_lshl_add_u32 v{T}, v{T+2}, 4, v{T}
    v_bfe_u32 v{T+2}, v1, 1, 1
    v_lshl_add_u32 v{T}, v{T+2}, 3, v{T}
    v_bfe_u32 v{T+2}, v1, 3, 1
    v_lshl_add_u32 v{D_BA}, v{T+2}, 6, v{T}
    v_xor_b32 v{D_BA+1}, 64, v{D_BA}
    ''')
    for s in (1, 2):
        for t in range(2):
            e(f'v_add_u32 v{D_BA+2*s+t}, {65536*s}, v{D_BA+t}')
    e(f'''
    v_and_b32 v{T}, 31, v1
    s_lshl_b32 s{S_T0}, s{S_RB}, 1
    s_add_u32 s{S_T0}, s{S_T0}, s{S_RT2}
    s_lshl_b32 s{S_T0}, s{S_T0}, 5
    v_add_u32 v{T}, s{S_T0}, v{T}
    v_lshlrev_b32 v{T}, 10, v{T}
    v_lshrrev_b32 v{T+1}, 5, v1
    v_lshl_add_u32 v{T}, v{T+1}, 4, v{T}
    s_lshl_b32 s{S_T0}, s{S_KQ}, 5
    s_add_u32 s{S_T0}, s{S_T0}, s{S_CGD}
    v_add_u32 v{D_XO}, s{S_T0}, v{T}
    ''')
    e.vmem(f'buffer_load_dwordx4 {vr(D_X,4)}, v{D_XO}, {srd(SRD_X)}, 0 offen', 'res')
    steps = [(j, j // 4, j % 4) for j in range(22)] + [(22 + j, 6 + j // 4, j % 4) for j in range(8)]
    DLA = 2
    def rd(i):
        if i >= len(steps): return
        j, u, q = steps[i]
        sel, ib = lds_sel(u % 5)
        for t in range(2):
            for jj in range(2):
                e.lds(f'ds_read_b64_tr_b16 {vr(D_WF+8*(i&3)+4*t+2*jj,2)}, v{D_BA+2*sel+t} offset:{ib+q*8192+jj*1024}', f'd{i}')
    def sync(u):
        e.wait_vm(f'dw{u}')
        e('s_barrier')
        if u >= 2 and u + 3 < 8: d_load(e, u + 3)
    stamp(e, 1)
    sync(0)
    stamp(e, 2)
    for i in range(DLA): rd(i)
    for i, (j, u, q) in enumerate(steps):
        ni = i + DLA
        if ni < len(steps) and steps[ni][2] == 0:
            sync(steps[ni][1])
            if steps[ni][1] in (2, 4, 6): stamp(e, 2 + steps[ni][1] // 2)
        rd(ni)
        e.wait_lg(f'd{i}')
        e.wait_vm(f'af{j}')
        w = D_WF + 8 * (i & 3)
        e(mfma(D_ACC, w, D_AF + 4 * j, '0' if i == 0 else None))
        e(mfma(D_ACC + 16, w + 4, D_AF + 4 * j, '0' if i == 0 else None))
    stamp(e, 6)
    e(f'''
    s_lshl_b32 s{S_T0}, s{S_RT2}, 15
    s_lshl_b32 s{S_T1}, s{S_KQ}, 11
    s_add_u32 s{S_T1}, s{S_T1}, s{S_T0}
    v_add_u32 v{T}, s{S_T1}, v{D_L16}
    s_lshl_b32 s{S_T1}, s{S_KQ}, 13
    s_add_u32 s{S_T1}, s{S_T1}, s{S_T0}
    v_add_u32 v{T+1}, s{S_T1}, v{D_L16}
    s_barrier
    s_nop 10
    ''')
    for d in range(4):
        for hh in range(2):
            e(f'ds_write_b128 v{T}, {vr(D_ACC+8*d+4*hh,4)} offset:{d*8192+hh*1024}')
    e('s_waitcnt lgkmcnt(0)')
    e('s_barrier')
    for s in range(4):
        for hh in range(2):
            e(f'ds_read_b128 {vr(32+8*s+4*hh,4)}, v{T+1} offset:{s*2048+hh*1024}')
    stamp(e, 7)
    e.wait_vm('res')
    for r in range(4):
        e(f'v_lshlrev_b32 v{T+2+2*r}, 16, v{D_X+r}')
        e(f'v_and_b32 v{T+3+2*r}, 0xffff0000, v{D_X+r}')
    for s in range(4):
        e(f's_waitcnt lgkmcnt({6-2*s})')
        for r in range(8):
            e(f'v_add_f32 v{T+2+r}, v{T+2+r}, v{32+8*s+r}')
    for r in range(4):
        e(f'v_cvt_pk_bf16_f32 v{D_X+r}, v{T+2+2*r}, v{T+3+2*r}')
    e(f'buffer_store_dwordx4 {vr(D_X,4)}, v{D_XO}, {srd(SRD_OUT)}, 0 offen')

def kernel(name, phases, nv=256, kidx=0):
    e = Emit()
    e.uid = hash(name) % 1000 * 1000
    end = f'L_end_{name}'
    e(f'.globl {name}\n.p2align 8\n.type {name},@function\n{name}:')
    setup(e, end)
    for ph in phases: ph(e)
    stamp_flush(e, kidx)
    e(f'{end}:\ns_endpgm')
    kd = f'''.amdhsa_kernel {name}
  .amdhsa_next_free_vgpr {nv}
  .amdhsa_next_free_sgpr 96
  .amdhsa_accum_offset {nv}
  .amdhsa_group_segment_fixed_size 0
  .amdhsa_kernarg_size 80
  .amdhsa_user_sgpr_count 2
  .amdhsa_user_sgpr_kernarg_segment_ptr 1
  .amdhsa_system_sgpr_workgroup_id_x 1
.end_amdhsa_kernel
'''
    return e.text(), kd

def build_multi():
    cfg.fused = False
    ks = [('k1_kernel', [phase_ab], 256, 163840), ('k2_kernel', [phase_c], 128, 135168), ('k3_kernel', [phase_d], 256, 163840)]
    head = ''.join(f'; @launch kernel={n} grid=(256,1,1) block=(512,1,1) lds={lds}\n' for n, _, _, lds in ks)
    body, kds = '', ''
    for kidx, (n, ph, nv, _) in enumerate(ks):
        t, kd = kernel(n, ph, nv, kidx)
        body += t; kds += '.p2align 6\n' + kd
    return head + '.amdgcn_target "amdgcn-amd-amdhsa--gfx950"\n.text\n' + body + '.section .rodata,"a"\n' + kds

if __name__ == '__main__':
    mode = sys.argv[1] if len(sys.argv) > 1 else 'multi'
    out = sys.argv[2] if len(sys.argv) > 2 else f'cdna_kernels/{NAME}.s'
    cfg.stamps = 'dbg' if 'dbg' in sys.argv[3:] else ('stamps' in sys.argv[3:])
    txt = build_multi()
    open(out, 'w').write(txt)
    print('wrote', out, len(txt), 'bytes')
```
